```python
import torch

def _softmax(x, axis=-1):
    return torch.softmax(x, dim=axis)
def _gelu(x):
    return torch.nn.functional.gelu(x, approximate="tanh")
def _silu(x):
    return torch.nn.functional.silu(x)
def _sigmoid(x):
    return torch.sigmoid(x)
def _layernorm(x, axis=-1, eps=1e-5):
    m = x.mean(dim=axis, keepdim=True)
    v = x.var(dim=axis, keepdim=True, unbiased=False)
    return (x - m) / torch.sqrt(v + eps)
def _scatter_add(tgt, idx, src, axis=0):
    return tgt.clone().index_add_(axis, idx, src)
def _segment_sum(src, seg, n):
    out = torch.zeros((n,) + src.shape[1:], dtype=src.dtype)
    return out.index_add_(0, seg, src)
def _pad(x, pw):
    flat = tuple(v for pair in reversed(pw) for v in pair)
    return torch.nn.functional.pad(x, flat)

kernel_name = 'standalone__mha_softmax__near_ridge'

def setup_inputs():

    _w = (lambda a: (lambda t: t.to(torch.bfloat16) if t.is_floating_point() else t)(torch.as_tensor(a)))
    B, H, Sq, Sk, D = 8, 16, 304, 1024, 256
    return {
        "q": _w((lambda *s: torch.randn(*s, dtype=torch.bfloat16) * 0.8)(B, H, Sq, D)),
        "k": _w((lambda *s: torch.randn(*s, dtype=torch.bfloat16) * 0.8)(B, H, Sk, D)),
        "v": _w((lambda *s: torch.randn(*s, dtype=torch.bfloat16) * 0.05)(B, H, Sk, D)),
    }

def reference(q, k, v):
    scale = q.shape[-1] ** -0.5
    scores = torch.einsum("bhqd,bhkd->bhqk", q, k) * scale
    p = _softmax(scores, axis=-1)
    return torch.einsum("bhqk,bhkd->bhqd", p, v)
```

```python
import sys, struct

opt = dict(kvp="nt", qp="nt", op="nt", stamps=0, xg=37,
           vr0=2, vr1=33, kr0=38, kr1=17, dma0=38, dma1=32, sm0=38, sm1=31, s5a=26, s5b=35, p5r0=12, p5r1=22,
           nodma=0, nolds=0, novalu=0, verbose=0, nobar=0, dmacost=8, wbatch=2, maxlds=2, nomfma=0)
for a in sys.argv[1:]:
    k, v = a.split("=", 1)
    opt[k] = type(opt[k])(v)

def f2u(x): return struct.unpack("<I", struct.pack("<f", x))[0]
CSCALE = f2u(1.4426950408889634 / 16.0)
THR = f2u(2.0 ** 30)
NAME = "standalone__mha_softmax__near_ridge_kernel"

O_OWN = 0; O5 = 128; S0 = 160; S1 = 176; S5 = 192; P = 196; P5OUT = 204
L_OWN = 206; L5 = 207; MC = 208; MC5 = 209; P5F = 210
VAK = 218; VAK5 = 226; VAV = 230; VOK = 234; VOV = 238; P5W = 240; P5R = 241
T = 242
A_V = 0; A_K = 64; A_K5 = 128; A_Q = 160; A_Q5 = 224
KBASE = 0; VBASE = 65536; P5BASE = 131072; XBASE = 135168; LDS_BYTES = 136192
S_W = 16
SRD_K = 20; SRD_V = 24; SRD_Q = 28; SRD_O = 32
S_KOFF = 36; S_VOFF = 37; S_WB = 38; S_C = 39; S_IT = 40; S_MODE = 41; S_THR = 42; S_ROWB = 43
S_OD = 44
S_T = 48
S_WS = 12

out = []
def E(s): out.append("  " + s)
def LBL(s): out.append(s + ":")
def vr(b, n=1): return f"v{b}" if n == 1 else f"v[{b}:{b+n-1}]"
def ar(b, n=1): return f"a{b}" if n == 1 else f"a[{b}:{b+n-1}]"
def R(pref, b, n): return [f"{pref}{b+i}" for i in range(n)]

class I:
    def __init__(s, text, kind, cost=4, rd=(), wr=(), lds=None, prod=None, exp=None, mem=None):
        s.text, s.kind, s.cost, s.rd, s.wr, s.lds = text, kind, cost, list(rd), list(wr), lds
        s.prod = prod
        s.exp = exp or {}
        s.mem = mem

DTI_ORDER = [1, 2, 3, 5, 6, 7, 0, 4]
def Sreg(n): return S0 if n % 2 == 0 else S1

def qk_mfmas(n):
    S = Sreg(n); seq = []; k5 = 0
    for s in range(16):
        c = "0" if s == 0 else vr(S, 16)
        e = {r: ("K", n, s) for r in R("a", A_K+4*s, 4)}
        seq.append(I(f"v_mfma_f32_32x32x16_bf16 {vr(S,16)}, {ar(A_K+4*s,4)}, {ar(A_Q+4*s,4)}, {c}", "mfma32",
                     rd=R("a", A_K+4*s, 4) + R("a", A_Q+4*s, 4) + (R("v", S, 16) if s else []), wr=R("v", S, 16), prod=("S", n, s), exp=e))
        if s % 2 == 1:
            c = "0" if k5 == 0 else vr(S5, 4)
            e = {r: ("K5", n, k5) for r in R("a", A_K5+4*k5, 4)}
            seq.append(I(f"v_mfma_f32_16x16x32_bf16 {vr(S5,4)}, {ar(A_K5+4*k5,4)}, {ar(A_Q5+4*k5,4)}, {c}", "mfma16",
                         rd=R("a", A_K5+4*k5, 4) + R("a", A_Q5+4*k5, 4) + (R("v", S5, 4) if k5 else []), wr=R("v", S5, 4), prod=("S5", n, k5), exp=e))
            k5 += 1
    return seq

def pv_mfmas(n):
    seq = []
    for t in range(2):
        for dti in DTI_ORDER:
            f = A_V + 4 * (dti * 2 + t)
            e = {r: ("V", n, dti, t) for r in R("a", f, 4)}
            e.update({f"v{P+4*t+k}": ("P", n, 4*t+k) for k in range(4)})
            seq.append(I(f"v_mfma_f32_32x32x16_bf16 {vr(O_OWN+16*dti,16)}, {ar(f,4)}, {vr(P+4*t,4)}, {vr(O_OWN+16*dti,16)}", "mfma32",
                         rd=R("a", f, 4) + R("v", P+4*t, 4) + R("v", O_OWN+16*dti, 16), wr=R("v", O_OWN+16*dti, 16), exp=e))
            if dti in (0, 4):
                x = dti // 4
                e = {r: ("V", n, dti, t) for r in R("a", f, 4)}
                e.update({r: ("P5F", n, t) for r in R("v", P5F+4*t, 4)})
                seq.append(I(f"v_mfma_f32_32x32x16_bf16 {vr(O5+16*x,16)}, {ar(f,4)}, {vr(P5F+4*t,4)}, {vr(O5+16*x,16)}", "mfma32",
                             rd=R("a", f, 4) + R("v", P5F+4*t, 4) + R("v", O5+16*x, 16), wr=R("v", O5+16*x, 16), exp=e))
    return seq

def softmax_stream(n, five):
    S, cnt, mc, l, pdst = (S5, 4, MC5, L5, P5OUT) if five else (Sreg(n), 16, MC, L_OWN, P)
    tg = "5" if five else ""
    last = ("S5", n, 7) if five else ("S", n, 15)
    fma = [I(f"v_fma_f32 {vr(S+r)}, {vr(S+r)}, s{S_C}, -{vr(mc)}", "valu", rd=[f"v{S+r}", f"v{mc}"], wr=[f"v{S+r}"],
             prod=("X"+tg, n, r), exp={f"v{S+r}": last}) for r in range(cnt)]
    ex = [I(f"v_exp_f32 {vr(S+r)}, {vr(S+r)}", "trans", 8, rd=[f"v{S+r}"], wr=[f"v{S+r}"], prod=("E"+tg, n, r), exp={f"v{S+r}": ("X"+tg, n, r)}) for r in range(cnt)]
    ad = [I(f"v_add_f32 {vr(l)}, {vr(l)}, {vr(S+r)}", "valu", rd=[f"v{S+r}", f"v{l}"], wr=[f"v{l}"], exp={f"v{S+r}": ("E"+tg, n, r)}) for r in range(cnt)]
    cv = [I(f"v_cvt_pk_bf16_f32 {vr(pdst+k)}, {vr(S+2*k)}, {vr(S+2*k+1)}", "valu", rd=[f"v{S+2*k}", f"v{S+2*k+1}"], wr=[f"v{pdst+k}"],
            prod=("P"+tg, n, k), exp={f"v{S+2*k}": ("E"+tg, n, 2*k), f"v{S+2*k+1}": ("E"+tg, n, 2*k+1)}) for k in range(cnt//2)]
    seq = []
    for r in range(cnt + 3):
        if r < cnt: seq.append(fma[r])
        if 0 <= r - 1 < cnt: seq.append(ex[r-1])
        if 0 <= r - 3 < cnt:
            rr = r - 3
            if rr % 2 == 1: seq.append(cv[rr // 2])
            seq.append(ad[rr])
    if five:
        seq.append(I(f"ds_write_b64 {vr(P5W)}, {vr(P5OUT,2)} offset:{(n%2)*2048}", "lds", rd=R("v", P5OUT, 2), lds="w",
                     exp={f"v{P5OUT+k}": ("P5", n, k) for k in range(2)}, mem=("wP", n)))
    return seq

def k_reads(n):
    slot = n % 4; seq = []; k5 = 0
    for s in range(16):
        seq.append(I(f"ds_read_b128 {ar(A_K+4*s,4)}, {vr(VAK+(s&7))} offset:{slot*16384+(s>>3)*256}", "lds", wr=R("a", A_K+4*s, 4), lds="r", prod=("K", n, s), mem=("rK", n)))
        if s % 2 == 1:
            seq.append(I(f"ds_read_b128 {ar(A_K5+4*k5,4)}, {vr(VAK5+(k5&3))} offset:{slot*16384+(k5>>2)*256}", "lds", wr=R("a", A_K5+4*k5, 4), lds="r", prod=("K5", n, k5), mem=("rK", n)))
            k5 += 1
    return seq

def v_reads(n):
    slot = n % 4; seq = []
    for t in range(2):
        for dti in DTI_ORDER:
            f = A_V + 4 * (dti * 2 + t)
            for jj in range(2):
                off = slot*16384 + (16*t + 8*jj)*512 + (dti >> 2)*256
                seq.append(I(f"ds_read_b64_tr_b16 {ar(f+2*jj,2)}, {vr(VAV+(dti&3))} offset:{off}", "lds", wr=R("a", f+2*jj, 2), lds="r", prod=("V", n, dti, t), mem=("rV", n)))
    return seq

def p5_reads(n):
    return [I(f"ds_read_b128 {vr(P5F+4*t,4)}, {vr(P5R)} offset:{(n%2)*2048+t*1024}", "lds", wr=R("v", P5F+4*t, 4), lds="r", prod=("P5F", n, t), mem=("rP", n)) for t in range(2)]

def dma_group(j):
    ks, vs = (j + 5) % 4, (j + 4) % 4
    seq = [I(f"s_add_u32 m0, s{S_WB}, {KBASE+ks*16384}", "salu"),
           I(f"s_add_u32 s{S_KOFF}, s{S_KOFF}, 16384", "salu")]
    for i in range(4):
        seq.append(I(f"buffer_load_dwordx4 {vr(VOK+i)}, s[{SRD_K}:{SRD_K+3}], s{S_KOFF} offen offset:{i*1024} {opt['kvp']} lds", "dma", opt["dmacost"], mem=("wK", j+5)))
    seq.append(I(f"s_add_u32 m0, s{S_WB}, {VBASE+vs*16384}", "salu"))
    seq.append(I(f"s_add_u32 s{S_VOFF}, s{S_VOFF}, 16384", "salu"))
    for i in range(4):
        seq.append(I(f"buffer_load_dwordx4 {vr(VOV+(i&1))}, s[{SRD_V}:{SRD_V+3}], s{S_VOFF} offen offset:{i*1024} {opt['kvp']} lds", "dma", opt["dmacost"], mem=("wV", j+4)))
    return seq

NG = 44
XG = opt["xg"]
SMALL = {g for g, x in enumerate(qk_mfmas(0) + pv_mfmas(0)) if x.kind == "mfma16"}
CAP = [8 if g in SMALL else 24 for g in range(NG)]

def schedule():
    pos = lambda g: (g - (XG + 1)) % NG
    proto = {"kr": (k_reads(0), opt["kr0"], opt["kr1"]), "dma": (dma_group(0), opt["dma0"], opt["dma1"]),
             "sm": (softmax_stream(0, False), opt["sm0"], opt["sm1"]), "vr": (v_reads(0), opt["vr0"], opt["vr1"]),
             "s5": (softmax_stream(0, True), opt["s5a"], opt["s5b"]), "p5": (p5_reads(0), opt["p5r0"], opt["p5r1"])}
    for k in ("kr", "vr", "p5"):
        if opt["nolds"]: proto.pop(k)
    for k in ("sm", "s5"):
        if opt["novalu"]: proto.pop(k)
    ideal = {}
    for name, (seq, g0, g1) in proto.items():
        p0, p1 = pos(g0), pos(g1)
        assert p0 <= p1, name
        w = [CAP[(XG + 1 + p) % NG] for p in range(p0, p1 + 1)]
        tw = sum(w); tot = sum(i.cost for i in seq); cum = 0; lst = []
        for it in seq:
            frac = (cum + it.cost / 2.0) / tot * tw
            acc = 0; k = 0
            while k < len(w) - 1 and acc + w[k] < frac:
                acc += w[k]; k += 1
            lst.append(p0 + k + (frac - acc) / w[k])
            cum += it.cost
        ideal[name] = (lst, p0, p1)
    nxt = {k: 0 for k in proto}
    gaps = [[] for _ in range(NG)]
    for p in range(NG):
        g = (XG + 1 + p) % NG
        cap = CAP[g] - (8 if g == XG else 0); used = 0; nl = 0
        while True:
            best = None
            for name, (seq, g0, g1) in proto.items():
                j = nxt[name]
                if j >= len(seq): continue
                lst, p0, p1 = ideal[name]
                if p < p0: continue
                it = seq[j]
                if lst[j] >= p + 1 and p < p1: continue
                if it.kind == "lds" and nl >= (opt["maxlds"] if CAP[g] > 8 else 1) and p < p1: continue
                overdue = lst[j] < p - 0.5 or p >= p1
                if used + it.cost > cap and not (p >= p1) and not (overdue and used < cap): continue
                if best is None or lst[j] < best[0]: best = (lst[j], name)
            if best is None: break
            name = best[1]; it = proto[name][0][nxt[name]]
            gaps[g].append((name, nxt[name])); used += it.cost; nl += it.kind == "lds"
            nxt[name] += 1
    for name in proto: assert nxt[name] == len(proto[name][0]), name
    return gaps
GAPS = schedule()

def build_step(i, qk=True, kr_cur=True, kr_next=True, dma_cur=True, dma_next=True, sm_next=True, vm=16, bar=True):
    m = qk_mfmas(i + 1) + pv_mfmas(i)
    st = {}
    for late in (False, True):
        n = i + 1 if late else i
        st[late] = {"kr": k_reads(n + 1), "dma": dma_group(n - 1), "sm": softmax_stream(n, False),
                    "vr": v_reads(i), "s5": softmax_stream(i + 1, True), "p5": p5_reads(i)}
    seq = []
    for g in range(NG):
        late = g > XG
        if qk or g >= 24: seq.append(m[g])
        for name, j in GAPS[g]:
            it = st[late][name][j]
            if name == "kr" and not (kr_next if late else kr_cur): continue
            if name == "dma":
                if not (dma_next if late else dma_cur): continue
                if opt["nodma"] and it.kind == "dma": continue
            if name == "sm" and late and not sm_next: continue
            if name == "s5" and not qk: continue
            seq.append(it)
        if g == XG and bar:
            w = "s_waitcnt lgkmcnt(0)" if (vm is None or opt["nodma"]) else f"s_waitcnt vmcnt({vm}) lgkmcnt(0)"
            seq.append(I(w, "wait", lds="all"))
            if not opt["nobar"]: seq.append(I("s_barrier", "bar"))
    if opt["nomfma"]: seq = [x for x in seq if not x.kind.startswith("mfma")]
    return seq

def insert_waits(seq_prev, seq):
    pend = []
    def run(s):
        nonlocal pend
        res = []
        for it in s:
            if it.kind in ("mfma32", "mfma16", "valu", "trans") or (it.kind == "lds" and it.lds == "w"):
                need = -1
                for k, wr in enumerate(pend):
                    if wr & set(it.rd): need = k
                if need >= 0:
                    n_after = len(pend) - need - 1
                    ext = opt["wbatch"]
                    while ext > 0 and n_after > 5:
                        n_after -= 1; ext -= 1
                    n_after = min(n_after, 15)
                    res.append(I(f"s_waitcnt lgkmcnt({n_after})", "wait"))
                    pend = pend[len(pend) - n_after:] if n_after > 0 else []
            if it.kind == "lds": pend.append(set(it.wr))
            if it.kind == "wait" and it.lds == "all": pend = []
            res.append(it)
        return res
    run(seq_prev)
    return run(seq)

def check_hazards(seq, name):
    bad = 0
    for i, it in enumerate(seq):
        for d in range(1, 14):
            j = i - d
            if j < 0: break
            pr = seq[j]; between = d - 1
            W = set(pr.wr)
            msg = None
            if pr.kind == "mfma32" and it.kind in ("valu", "trans", "lds") and (W & set(it.rd + it.wr)) and between < 12: msg = "mfma32->valu"
            if pr.kind == "mfma16" and it.kind in ("valu", "trans", "lds") and (W & set(it.rd + it.wr)) and between < 8: msg = "mfma16->valu"
            if pr.kind in ("valu", "trans") and it.kind.startswith("mfma") and (W & set(it.rd)) and between < 2: msg = "valu->mfma"
            if pr.kind == "trans" and it.kind in ("valu", "lds") and (W & set(it.rd)) and between < 1: msg = "trans->valu"
            if pr.kind.startswith("mfma") and it.kind.startswith("mfma") and (W & set(it.rd)) and set(pr.wr) != set(it.wr): msg = "mfma->mfma operand"
            if pr.kind == "salu" and pr.text.startswith("s_add_u32 m0") and it.kind == "dma" and between < 1: msg = "m0->dma"
            if msg:
                sys.stderr.write(f"HAZARD {name}: {msg}: [{pr.text}] -> [{it.text}] dist {between}\n"); bad += 1
    return bad

def symbolic_check(seqs, first):
    ver = {}
    landed = set(); released = set(); xi = first - 1
    errs = 0
    for i, seq in seqs:
        for it in seq:
            for r, e in it.exp.items():
                if r in ver and ver[r] != e:
                    sys.stderr.write(f"SYM it{i}: [{it.text}] {r} has {ver[r]} expected {e}\n"); errs += 1
                elif r not in ver and i > first + 1:
                    sys.stderr.write(f"SYM it{i}: [{it.text}] {r} never written, expected {e}\n"); errs += 1
            if it.prod is not None:
                for r in it.wr: ver[r] = it.prod
            if it.kind == "bar": xi = i
            if it.mem:
                k, n = it.mem
                ok = True
                if k == "rK": ok = (n <= xi + 2) and (n >= xi + 2 or n == xi + 2 or n > xi + 1)
                if k == "rK": ok = (n == xi + 2)
                if k == "rV": ok = (n == xi + 1)
                if k == "wK": ok = (n == xi + 5)
                if k == "wV": ok = (n == xi + 4)
                if k == "wP": ok = (n == xi + 2)
                if k == "rP": ok = (n == xi + 1)
                if not ok and not opt["nobar"]:
                    sys.stderr.write(f"SYM it{i}: [{it.text}] mem {it.mem} after X({xi})\n"); errs += 1
    return errs

hdr = [f"; @launch grid=(256,1,1) block=(256,1,1) lds={LDS_BYTES}",
       '.amdgcn_target "amdgcn-amd-amdhsa--gfx950"', ".text", f".globl {NAME}", ".p2align 8",
       f".type {NAME},@function", f"{NAME}:"]
E("s_cmp_ge_u32 s2, 256")
E("s_cbranch_scc1 L_done")
E("s_load_dwordx4 s[4:7], s[0:1], 0")
E("s_load_dwordx4 s[8:11], s[0:1], 16")
if opt["stamps"]:
    E(f"s_load_dwordx2 s[{S_WS}:{S_WS+1}], s[0:1], 40")
    E("s_memrealtime s[60:61]")
    E("s_memtime s[64:65]")
E("s_and_b32 s14, s2, 7")
E("s_lshr_b32 s15, s2, 4")
E("s_lshl_b32 s15, s15, 3")
E("s_add_u32 s14, s14, s15")
E("s_lshr_b32 s15, s2, 3")
E("s_and_b32 s15, s15, 1")
t0, t1, t2, t3, t4, t5, t6, t7 = [T + i for i in range(8)]
LANE, K32, HH, Q16, GG = T + 8, T + 9, T + 10, T + 11, T + 12
QOFF = T + 13
E(f"v_lshrrev_b32 {vr(t0)}, 6, v0")
E(f"v_and_b32 {vr(LANE)}, 63, v0")
E(f"v_readfirstlane_b32 s{S_W}, {vr(t0)}")
E(f"v_and_b32 {vr(K32)}, 31, {vr(LANE)}")
E(f"v_lshrrev_b32 {vr(HH)}, 5, {vr(LANE)}")
E(f"v_and_b32 {vr(Q16)}, 15, {vr(LANE)}")
E(f"v_lshrrev_b32 {vr(GG)}, 4, {vr(LANE)}")
E(f"s_lshl_b32 s{S_WB}, s{S_W}, 12")
E("s_waitcnt lgkmcnt(0)")
E(f"s_lshl_b32 s{S_T}, s14, 19")
for srd, src in ((SRD_K, 6), (SRD_V, 8)):
    E(f"s_add_u32 s{srd}, s{src}, s{S_T}")
    E(f"s_addc_u32 s{srd+1}, s{src+1}, 0")
    E(f"s_and_b32 s{srd+1}, s{srd+1}, 0xffff")
    E(f"s_mov_b32 s{srd+2}, 524288")
    E(f"s_mov_b32 s{srd+3}, 0x20000")
for srd, src in ((SRD_Q, 4), (SRD_O, 10)):
    E(f"s_mov_b32 s{srd}, s{src}")
    E(f"s_and_b32 s{srd+1}, s{src+1}, 0xffff")
    E(f"s_mov_b32 s{srd+2}, 19922944")
    E(f"s_mov_b32 s{srd+3}, 0x20000")
E(f"s_lshl_b32 s{S_T+1}, s{S_W}, 3")
E(f"v_add_u32 {vr(t0)}, s{S_T+1}, {vr(HH)}")
E(f"v_lshlrev_b32 {vr(t1)}, 9, {vr(t0)}")
for i in range(4):
    E(f"v_add_u32 {vr(t2)}, {2*i}, {vr(t0)}")
    E(f"v_and_b32 {vr(t2)}, 15, {vr(t2)}")
    E(f"v_xor_b32 {vr(t2)}, {vr(t2)}, {vr(K32)}")
    E(f"v_lshl_add_u32 {vr(VOK+i)}, {vr(t2)}, 4, {vr(t1)}")
for i in range(2):
    E(f"v_add_u32 {vr(t2)}, {2*i}, {vr(HH)}")
    E(f"v_and_b32 {vr(t2)}, 3, {vr(t2)}")
    E(f"v_lshlrev_b32 {vr(t2)}, 2, {vr(t2)}")
    E(f"v_xor_b32 {vr(t2)}, {vr(t2)}, {vr(K32)}")
    E(f"v_lshl_add_u32 {vr(VOV+i)}, {vr(t2)}, 4, {vr(t1)}")

def dma_K(slot):
    E(f"s_add_u32 m0, s{S_WB}, {KBASE+slot*16384}")
    E("s_nop 0")
    for i in range(4):
        E(f"buffer_load_dwordx4 {vr(VOK+i)}, s[{SRD_K}:{SRD_K+3}], s{S_KOFF} offen offset:{i*1024} {opt['kvp']} lds")
def dma_V(slot):
    E(f"s_add_u32 m0, s{S_WB}, {VBASE+slot*16384}")
    E("s_nop 0")
    for i in range(4):
        E(f"buffer_load_dwordx4 {vr(VOV+(i&1))}, s[{SRD_V}:{SRD_V+3}], s{S_VOFF} offen offset:{i*1024} {opt['kvp']} lds")

E(f"s_mov_b32 s{S_KOFF}, 0")
dma_K(0)
E(f"s_mul_i32 s{S_T}, s14, 155648")
E(f"s_mul_i32 s{S_T+1}, s15, {152*512}")
E(f"s_add_u32 s{S_T}, s{S_T}, s{S_T+1}")
E(f"s_lshl_b32 s{S_T+1}, s{S_W}, 14")
E(f"s_add_u32 s{S_T+1}, s{S_T+1}, s{S_T}")
E(f"v_lshlrev_b32 {vr(t2)}, 9, {vr(K32)}")
E(f"v_lshl_add_u32 {vr(t2)}, {vr(HH)}, 4, {vr(t2)}")
E(f"v_add_u32 {vr(QOFF)}, s{S_T+1}, {vr(t2)}")
for s in range(16):
    E(f"buffer_load_dwordx4 {ar(A_Q+4*s,4)}, {vr(QOFF)}, s[{SRD_Q}:{SRD_Q+3}], 0 offen offset:{s*32} {opt['qp']}")
E(f"s_lshr_b32 s{S_T+2}, s{S_W}, 1")
E(f"s_lshl_b32 s{S_T+2}, s{S_T+2}, 4")
E(f"v_add_u32 {vr(t3)}, s{S_T+2}, {vr(Q16)}")
E(f"v_lshlrev_b32 {vr(t4)}, 9, {vr(t3)}")
E(f"v_lshl_add_u32 {vr(t4)}, {vr(GG)}, 4, {vr(t4)}")
E(f"s_add_u32 s{S_T+3}, s{S_T}, {128*512}")
E(f"v_add_u32 {vr(t4)}, s{S_T+3}, {vr(t4)}")
E(f"v_cmp_gt_u32 vcc, 24, {vr(t3)}")
E(f"v_mov_b32 {vr(t5)}, 0x7ff00000")
E("s_nop 1")
E(f"v_cndmask_b32 {vr(t4)}, {vr(t5)}, {vr(t4)}, vcc")
for s in range(8):
    E(f"buffer_load_dwordx4 {ar(A_Q5+4*s,4)}, {vr(t4)}, s[{SRD_Q}:{SRD_Q+3}], 0 offen offset:{s*64} {opt['qp']}")
E(f"s_mov_b32 s{S_ROWB}, s{S_T}")
E(f"s_mov_b32 s{S_MODE}, 0")
E(f"s_mov_b32 s{S_C}, {CSCALE:#x}")
E(f"s_mov_b32 s{S_THR}, {THR:#x}")
E(f"v_and_b32 {vr(t0)}, 15, {vr(K32)}")
E(f"v_lshlrev_b32 {vr(t1)}, 9, {vr(K32)}")
for j in range(8):
    E(f"v_add_u32 {vr(t2)}, {2*j}, {vr(HH)}")
    E(f"v_xor_b32 {vr(t2)}, {vr(t2)}, {vr(t0)}")
    E(f"v_lshl_add_u32 {vr(VAK+j)}, {vr(t2)}, 4, {vr(t1)}")
E(f"s_and_b32 s{S_T+1}, s{S_W}, 1")
E(f"s_lshl_b32 s{S_T+1}, s{S_T+1}, 13")
E(f"v_lshlrev_b32 {vr(t1)}, 9, {vr(Q16)}")
E(f"v_add_u32 {vr(t1)}, s{S_T+1}, {vr(t1)}")
for j in range(4):
    E(f"v_add_u32 {vr(t2)}, {4*j}, {vr(GG)}")
    E(f"v_xor_b32 {vr(t2)}, {vr(t2)}, {vr(Q16)}")
    E(f"v_lshl_add_u32 {vr(VAK5+j)}, {vr(t2)}, 4, {vr(t1)}")
E(f"v_bfe_u32 {vr(t0)}, {vr(LANE)}, 2, 2")
E(f"v_lshl_add_u32 {vr(t1)}, {vr(HH)}, 2, {vr(t0)}")
E(f"v_lshlrev_b32 {vr(t1)}, 9, {vr(t1)}")
E(f"v_and_b32 {vr(t2)}, 1, {vr(GG)}")
E(f"v_lshl_add_u32 {vr(t1)}, {vr(t2)}, 5, {vr(t1)}")
E(f"v_and_b32 {vr(t2)}, 3, {vr(LANE)}")
E(f"v_lshl_add_u32 {vr(t1)}, {vr(t2)}, 3, {vr(t1)}")
E(f"v_add_u32 {vr(t1)}, {VBASE}, {vr(t1)}")
E(f"v_xor_b32 {vr(t0)}, s{S_W}, {vr(t0)}")
for j in range(4):
    E(f"v_xor_b32 {vr(t2)}, {j}, {vr(t0)}")
    E(f"v_lshl_add_u32 {vr(VAV+j)}, {vr(t2)}, 6, {vr(t1)}")
E(f"v_and_b32 {vr(t0)}, 1, {vr(GG)}")
E(f"v_lshlrev_b32 {vr(t0)}, 5, {vr(t0)}")
E(f"v_add_u32 {vr(t0)}, {vr(t0)}, {vr(t3)}")
E(f"v_lshlrev_b32 {vr(t0)}, 4, {vr(t0)}")
E(f"v_lshrrev_b32 {vr(t1)}, 1, {vr(GG)}")
E(f"v_lshl_add_u32 {vr(t0)}, {vr(t1)}, 3, {vr(t0)}")
E(f"s_and_b32 s{S_T+1}, s{S_W}, 1")
E(f"s_lshl_b32 s{S_T+1}, s{S_T+1}, 10")
E(f"s_add_u32 s{S_T+1}, s{S_T+1}, {P5BASE}")
E(f"v_add_u32 {vr(P5W)}, s{S_T+1}, {vr(t0)}")
E(f"v_lshlrev_b32 {vr(t0)}, 4, {vr(LANE)}")
E(f"v_add_u32 {vr(P5R)}, {P5BASE}, {vr(t0)}")
for j in range(4):
    E(f"s_xor_b32 s{S_OD+j}, s{S_W}, {j}")
    E(f"s_lshl_b32 s{S_OD+j}, s{S_OD+j}, 6")
E("s_branch L_ring")

LBL("L_restart")
E(f"s_mov_b32 s{S_KOFF}, 0")
dma_K(0)
LBL("L_ring")
E(f"s_mov_b32 s{S_VOFF}, 0")
for n in range(3):
    E(f"s_add_u32 s{S_KOFF}, s{S_KOFF}, 16384")
    dma_K(n + 1)
    dma_V(n)
    E(f"s_add_u32 s{S_VOFF}, s{S_VOFF}, 16384")
E(f"s_sub_u32 s{S_VOFF}, s{S_VOFF}, 16384")
for r in range(160):
    E(f"v_mov_b32 {vr(r)}, 0")
E(f"v_mov_b32 {vr(L_OWN)}, 0")
E(f"v_mov_b32 {vr(L5)}, 0")
E("s_waitcnt vmcnt(24)")
E("s_barrier")
S5B = S1
def qk_both(slot_unused=0):
    for it in k_reads(0): E(it.text)
    for j in range(4):
        E(f"v_xor_b32 {vr(t0+j)}, 8192, {vr(VAK5+j)}")
    for k5 in range(8):
        E(f"ds_read_b128 {ar(A_V+4*k5,4)}, {vr(t0+(k5&3))} offset:{(k5>>2)*256}")
    E("s_waitcnt lgkmcnt(0)")
    for s in range(16):
        c = "0" if s == 0 else vr(S0, 16)
        E(f"v_mfma_f32_32x32x16_bf16 {vr(S0,16)}, {ar(A_K+4*s,4)}, {ar(A_Q+4*s,4)}, {c}")
    for k5 in range(8):
        c = "0" if k5 == 0 else vr(S5, 4)
        E(f"v_mfma_f32_16x16x32_bf16 {vr(S5,4)}, {ar(A_K5+4*k5,4)}, {ar(A_Q5+4*k5,4)}, {c}")
    for k5 in range(8):
        c = "0" if k5 == 0 else vr(S5B, 4)
        E(f"v_mfma_f32_16x16x32_bf16 {vr(S5B,4)}, {ar(A_V+4*k5,4)}, {ar(A_Q5+4*k5,4)}, {c}")
    E("s_nop 15")
qk_both()
E(f"s_cmp_eq_u32 s{S_MODE}, 0")
E("s_cbranch_scc0 L_have_max")
def cross_op(dst, full16, op, tmp):
    E(f"v_mov_b32 {vr(tmp)}, {vr(dst)}")
    E("s_nop 1")
    E(f"v_permlane32_swap_b32 {vr(dst)}, {vr(tmp)}")
    E("s_nop 1")
    E(f"{op} {vr(dst)}, {vr(dst)}, {vr(tmp)}")
    if full16:
        E(f"v_mov_b32 {vr(tmp)}, {vr(dst)}")
        E("s_nop 1")
        E(f"v_permlane16_swap_b32 {vr(dst)}, {vr(tmp)}")
        E("s_nop 1")
        E(f"{op} {vr(dst)}, {vr(dst)}, {vr(tmp)}")
def cross_max(dst, full16): cross_op(dst, full16, "v_max_f32", t7)
def max_reduce(dst, srcs, full16):
    E(f"v_max3_f32 {vr(dst)}, {vr(srcs[0])}, {vr(srcs[1])}, {vr(srcs[2])}")
    k = 3
    while k + 1 < len(srcs):
        E(f"v_max3_f32 {vr(dst)}, {vr(dst)}, {vr(srcs[k])}, {vr(srcs[k+1])}"); k += 2
    if k < len(srcs):
        E(f"v_max_f32 {vr(dst)}, {vr(dst)}, {vr(srcs[k])}")
    cross_max(dst, full16)
max_reduce(MC, [S0 + r for r in range(16)], False)
max_reduce(MC5, [S5 + r for r in range(4)] + [S5B + r for r in range(4)], True)
E(f"v_mul_f32 {vr(MC)}, s{S_C}, {vr(MC)}")
E(f"v_mul_f32 {vr(MC5)}, s{S_C}, {vr(MC5)}")
LBL("L_have_max")
for it in softmax_stream(0, True):
    E(it.text); E("s_nop 0")
E("s_waitcnt vmcnt(16) lgkmcnt(0)")
E("s_barrier")

NIT = 32
def step_for(i):
    if i <= 27: return build_step(i)
    if i == 28: return build_step(i, dma_next=False)
    if i == 29: return build_step(i, dma_cur=False, dma_next=False, vm=8)
    if i == 30: return build_step(i, dma_cur=False, dma_next=False, kr_next=False, vm=0)
    if i == 31: return build_step(i, qk=False, kr_cur=False, kr_next=False, dma_cur=False, dma_next=False, sm_next=False, bar=False)
allsteps = [step_for(i) for i in range(NIT)]
pro = build_step(-1)
xi = max(k for k, it in enumerate(pro) if it.kind == "bar" or (it.kind == "wait" and it.lds == "all"))
pro_tail = [it for it in pro[xi + 1:] if not it.kind.startswith("mfma")]
errs = symbolic_check([(-1, [I("", "bar")] + pro_tail)] + [(i, s) for i, s in enumerate(allsteps)], -1)
for it in pro_tail:
    E(it.text)
    if it.kind == "trans": E("s_nop 0")
E(f"s_mov_b32 s{S_IT}, 0")
E("s_waitcnt lgkmcnt(0)")
if opt["stamps"]: E("s_memtime s[66:67]")
out.append(".p2align 6")
LBL("L_loop")
nb = 0
ninstr = 0
for st in range(4):
    prev = build_step(st + 3)
    seq = insert_waits(prev, build_step(st + 4))
    nb += check_hazards(prev[-14:] + seq, f"step{st}")
    ninstr = len(seq)
    for it in seq: E(it.text)
E(f"s_add_u32 s{S_IT}, s{S_IT}, 1")
E(f"s_cmp_lt_u32 s{S_IT}, 7")
E("s_cbranch_scc1 L_loop")
for i in range(28, 32):
    prev = allsteps[i - 1]
    seq = insert_waits(prev, allsteps[i])
    if i == 31:
        fixed = []
        for it in seq:
            if it.kind.startswith("mfma") and fixed and fixed[-1].kind in ("valu", "trans"):
                fixed.append(I("s_nop 1", "salu"))
            if it.kind == "valu" and fixed and fixed[-1].kind == "trans":
                fixed.append(I("s_nop 0", "salu"))
            fixed.append(it)
        seq = fixed
    nb += check_hazards(prev[-14:] + seq, f"tail{i}")
    for it in seq: E(it.text)
if opt["stamps"]: E("s_memtime s[68:69]")
if opt["verbose"]:
    m = qk_mfmas(1) + pv_mfmas(0)
    proto = {"kr": k_reads(0), "dma": dma_group(0), "sm": softmax_stream(0, False), "vr": v_reads(0), "s5": softmax_stream(0, True), "p5": p5_reads(0)}
    tot = 0
    for g in range(NG):
        c = sum(proto[n][j].cost for n, j in GAPS[g]); tot += c
        sys.stderr.write(f"gap {g:2d} {m[g].kind:7s} {c:3d}/{CAP[g]} {'OVER' if c > CAP[g] else '    '} " + " ".join(f"{n}{j}" for n, j in GAPS[g]) + "\n")
    sys.stderr.write(f"total filler {tot}; instrs/step {ninstr}; hazards {nb}; sym errs {errs}\n")
assert errs == 0 and nb == 0, (errs, nb)

E("s_waitcnt vmcnt(0) lgkmcnt(0)")
E("s_nop 15")
cross_op(L_OWN, False, "v_add_f32", t7)
cross_op(L5, True, "v_add_f32", t7)
E(f"v_mbcnt_lo_u32_b32 {vr(LANE)}, -1, 0")
E(f"v_mbcnt_hi_u32_b32 {vr(LANE)}, -1, {vr(LANE)}")
E(f"v_and_b32 {vr(Q16)}, 15, {vr(LANE)}")
E(f"v_and_b32 {vr(K32)}, 31, {vr(LANE)}")
E(f"s_lshr_b32 s{S_T}, s{S_W}, 1")
E(f"s_lshl_b32 s{S_T}, s{S_T}, 6")
E(f"s_and_b32 s{S_T+1}, s{S_W}, 1")
E(f"s_lshl_b32 s{S_T+1}, s{S_T+1}, 7")
E(f"s_add_u32 s{S_T}, s{S_T}, s{S_T+1}")
E(f"s_add_u32 s{S_T}, s{S_T}, {XBASE}")
E(f"v_lshlrev_b32 {vr(t0)}, 2, {vr(Q16)}")
E(f"v_add_u32 {vr(t0)}, s{S_T}, {vr(t0)}")
E(f"ds_write_b32 {vr(t0)}, {vr(L5)}")
E(f"v_max_f32 {vr(t1)}, {vr(L_OWN)}, {vr(L5)}")
E(f"v_cmp_lt_f32 vcc, s{S_THR}, {vr(t1)}")
E("s_nop 4")
E("s_cmp_lg_u64 vcc, 0")
E(f"s_cselect_b32 s{S_T+2}, 1, 0")
E(f"v_mov_b32 {vr(t1)}, s{S_T+2}")
E(f"s_lshl_b32 s{S_T+3}, s{S_W}, 2")
E(f"s_add_u32 s{S_T+3}, s{S_T+3}, {XBASE+256}")
E(f"v_mov_b32 {vr(t2)}, s{S_T+3}")
E(f"ds_write_b32 {vr(t2)}, {vr(t1)}")
E("s_waitcnt lgkmcnt(0)")
E("s_barrier")
E(f"v_lshlrev_b32 {vr(t0)}, 2, {vr(K32)}")
E(f"v_add_u32 {vr(t0)}, {XBASE}, {vr(t0)}")
E(f"ds_read_b32 {vr(t1)}, {vr(t0)}")
E(f"ds_read_b32 {vr(t2)}, {vr(t0)} offset:128")
E(f"v_mov_b32 {vr(t3)}, {XBASE+256}")
E(f"ds_read_b128 {vr(t4,4)}, {vr(t3)}")
E("s_waitcnt lgkmcnt(0)")
E(f"v_or_b32 {vr(t4)}, {vr(t4)}, {vr(t5)}")
E(f"v_or3_b32 {vr(t4)}, {vr(t4)}, {vr(t6)}, {vr(t7)}")
E(f"v_add_f32 {vr(L5)}, {vr(t1)}, {vr(t2)}")
E(f"v_readfirstlane_b32 s{S_T}, {vr(t4)}")
E("s_nop 3")
E(f"s_cmp_lg_u32 s{S_MODE}, 0")
E("s_cbranch_scc1 L_final")
E(f"s_cmp_lg_u32 s{S_T}, 0")
E("s_cbranch_scc1 L_maxpass")
LBL("L_final")
E(f"v_rcp_f32 {vr(L_OWN)}, {vr(L_OWN)}")
E(f"v_rcp_f32 {vr(L5)}, {vr(L5)}")
E("s_nop 1")
O5OFF = t0
E(f"v_lshlrev_b32 {vr(t1)}, 9, {vr(K32)}")
E(f"v_lshrrev_b32 {vr(t2)}, 5, {vr(LANE)}")
E(f"v_lshl_add_u32 {vr(t1)}, {vr(t2)}, 4, {vr(t1)}")
E(f"s_add_u32 s{S_T}, s{S_ROWB}, {128*512}")
E(f"v_add_u32 {vr(t1)}, s{S_T}, {vr(t1)}")
E(f"v_cmp_gt_u32 vcc, 24, {vr(K32)}")
E(f"v_mov_b32 {vr(t2)}, 0x7ff00000")
E("s_nop 1")
E(f"v_cndmask_b32 {vr(O5OFF)}, {vr(t2)}, {vr(t1)}, vcc")
def store_tile(base, rinv, voff, soff, imm):
    for r in range(16):
        E(f"v_mul_f32 {vr(base+r)}, {vr(base+r)}, {vr(rinv)}")
    for k in range(8):
        E(f"v_cvt_pk_bf16_f32 {vr(base+k)}, {vr(base+2*k)}, {vr(base+2*k+1)}")
    E("s_nop 1")
    for rq in (0, 2):
        b = base + 2 * rq
        E(f"v_permlane32_swap_b32 {vr(b)}, {vr(b+2)}")
        E(f"v_permlane32_swap_b32 {vr(b+1)}, {vr(b+3)}")
    for rq in (0, 2):
        b = base + 2 * rq
        E(f"buffer_store_dwordx4 {vr(b,4)}, {vr(voff)}, s[{SRD_O}:{SRD_O+3}], {soff} offen offset:{imm+rq*16} {opt['op']}")
for i in range(8):
    store_tile(O_OWN + 16 * i, L_OWN, QOFF, f"s{S_OD+(i&3)}", (i >> 2) * 256)
E(f"s_lshl_b32 s{S_T}, s{S_W}, 6")
for x in range(2):
    store_tile(O5 + 16 * x, L5, O5OFF, f"s{S_T}", x * 256)
if opt["stamps"]:
    E("s_waitcnt vmcnt(0)")
    E("s_memrealtime s[62:63]")
    E("s_memtime s[70:71]")
    E("s_waitcnt lgkmcnt(0)")
    E(f"s_mov_b32 s72, s{S_WS}")
    E(f"s_and_b32 s73, s{S_WS+1}, 0xffff")
    E("s_mov_b32 s74, 65536")
    E("s_mov_b32 s75, 0x20000")
    E("s_sub_u32 s66, s66, s64")
    E("s_sub_u32 s68, s68, s64")
    E("s_sub_u32 s70, s70, s64")
    for k, sreg in enumerate((60, 61, 62, 63)):
        E(f"v_mov_b32 v{k}, s{sreg}")
    E("v_mov_b32 v4, s66"); E("v_mov_b32 v5, s68"); E("v_mov_b32 v6, s70"); E("v_mov_b32 v7, 0")
    E("s_lshl_b32 s76, s2, 6")
    E(f"s_lshl_b32 s77, s{S_W}, 4")
    E("s_add_u32 s76, s76, s77")
    E("v_mov_b32 v8, s76")
    E(f"v_cmp_eq_u32 vcc, 0, {vr(LANE)}")
    E("s_and_saveexec_b64 s[78:79], vcc")
    E("buffer_store_dwordx4 v[0:3], v8, s[72:75], 0 offen")
    E("v_add_u32 v8, 0x8000, v8")
    E("buffer_store_dwordx4 v[4:7], v8, s[72:75], 0 offen")
E("s_endpgm")

LBL("L_maxpass")
E(f"s_mov_b32 s{S_MODE}, 1")
E(f"v_mov_b32 {vr(MC)}, 0xff800000")
E(f"v_mov_b32 {vr(MC5)}, 0xff800000")
E(f"s_mov_b32 s{S_KOFF}, 0")
LBL("L_maxloop")
E("s_barrier")
dma_K(0)
E("s_waitcnt vmcnt(0)")
E("s_barrier")
qk_both()
for r in range(0, 16, 2):
    E(f"v_max3_f32 {vr(MC)}, {vr(MC)}, {vr(S0+r)}, {vr(S0+r+1)}")
for r in range(0, 4, 2):
    E(f"v_max3_f32 {vr(MC5)}, {vr(MC5)}, {vr(S5+r)}, {vr(S5+r+1)}")
    E(f"v_max3_f32 {vr(MC5)}, {vr(MC5)}, {vr(S5B+r)}, {vr(S5B+r+1)}")
E(f"s_add_u32 s{S_KOFF}, s{S_KOFF}, 16384")
E(f"s_cmp_lt_u32 s{S_KOFF}, 524288")
E("s_cbranch_scc1 L_maxloop")
cross_max(MC, False)
cross_max(MC5, True)
E(f"v_mul_f32 {vr(MC)}, s{S_C}, {vr(MC)}")
E(f"v_mul_f32 {vr(MC5)}, s{S_C}, {vr(MC5)}")
E("s_barrier")
E("s_branch L_restart")
LBL("L_done")
E("s_endpgm")

tail = ['.section .rodata,"a"', ".p2align 6", f".amdhsa_kernel {NAME}",
        "  .amdhsa_next_free_vgpr 512", "  .amdhsa_next_free_sgpr 102", "  .amdhsa_accum_offset 256",
        "  .amdhsa_group_segment_fixed_size 0", "  .amdhsa_kernarg_size 48", "  .amdhsa_user_sgpr_count 2",
        "  .amdhsa_user_sgpr_kernarg_segment_ptr 1", "  .amdhsa_system_sgpr_workgroup_id_x 1", ".end_amdhsa_kernel"]
print("\n".join(hdr + out + tail))
```

```python
import sys, struct

opt = dict(kvp="nt", qp="nt", op="nt", stamps=0, verbose=0,
           vr0=0, vr1=33, s5a=27, s5b=37, kr0=40, kr1=72, dma0=41, dma1=78, sm0=41, sm1=37,
           nodma=0, nolds=0, novalu=0, nobar=0, nomfma=0, skip9=0,
           patb="KEKKKEKDKEKKVKEKDKEKVKKEKDKEKVKVEVDVEVVV",
           pata="VEVVDVEVVVEVVeVeVDeVeVVWEVVVEVVVVVVEDEDX")
for a in sys.argv[1:]:
    k, v = a.split("=", 1)
    opt[k] = type(opt[k])(v)
EXPERIMENT = opt["nodma"] or opt["nolds"] or opt["novalu"] or opt["nobar"] or opt["nomfma"]

def f2u(x): return struct.unpack("<I", struct.pack("<f", x))[0]
CSCALE = f2u(1.4426950408889634 / 16.0)
THR = f2u(2.0 ** 30)
NAME = "standalone__mha_softmax__near_ridge_kernel"

O_OWN = 0; O5 = 128; SA = 160; SB = 176; S5 = 192; PA = 196; PB = 204; P5OUT = 212
L0 = 214; L5 = 216; MC0 = 217; MC5 = 219
VAK = 220; VAV = 224; VOK = 232; VOV = 236; P5W = 240; P5R = 241
T = 242
A_V = 0; A_K = 64; A_Q = 128; A_Q5 = 192; A_P5F = 224
KBASE = 0; VBASE = 65536; P5BASE = 131072; XBASE = 135168; Q5BASE = 136192; LDS_BYTES = 152576
S_W = 16
SRD_K = 20; SRD_V = 24; SRD_Q = 28; SRD_O = 32
S_KOFF = 36; S_VOFF = 37; S_WB = 38; S_C = 39; S_IT = 40; S_MODE = 41; S_THR = 42; S_HALF = 15
S_T = 48
S_WS = 12

out = []
def E(s): out.append("  " + s)
def LBL(s): out.append(s + ":")
def STAMP(k):
    if opt["stamps"]: out.append(f"  s_memtime s[{80+2*k}:{81+2*k}]")
def vr(b, n=1): return f"v{b}" if n == 1 else f"v[{b}:{b+n-1}]"
def ar(b, n=1): return f"a{b}" if n == 1 else f"a[{b}:{b+n-1}]"
def R(pref, b, n): return [f"{pref}{b+i}" for i in range(n)]

class I:
    def __init__(s, text, kind, rd=(), wr=(), lds=None, prod=None, exp=None, mem=None):
        s.text, s.kind, s.rd, s.wr, s.lds = text, kind, list(rd), list(wr), lds
        s.prod = prod; s.exp = exp or {}; s.mem = mem
        s.slots = 2 if kind == "trans" else 1

def Sreg(n): return SA if n % 2 == 0 else SB
def Preg(n): return PA if n % 2 == 0 else PB
def P5Freg(n): return A_P5F + 8 * (n % 2)
def Sblk(n, kb, qt): return Sreg(n) + 8 * kb + 4 * qt
def Kfrag(kb, s): return A_K + 4 * (8 * kb + s)
def Qfrag(qt, s): return A_Q + 32 * qt + 4 * s
I_ORDER = [1, 2, 3, 5, 6, 7, 9, 10, 11, 13, 14, 15, 0, 4, 8, 12]
MF = "v_mfma_f32_16x16x32_bf16"

class Var:
    def __init__(s, kh, q5, pv9): s.kh, s.q5, s.pv9 = kh, q5, pv9; s.name = f"k{kh}q{int(q5)}p{int(pv9)}"

def qk_mfmas(n, V, full=False):
    seq = []
    for s_ in range(8):
        f = Kfrag(V.kh, s_)
        c = "0" if s_ == 0 else vr(S5, 4)
        e = {r: ("K", n, V.kh, s_) for r in R("a", f, 4)}
        it = I(f"{MF} {vr(S5,4)}, {ar(f,4)}, {ar(A_Q5+4*s_,4)}, {c}", "mfma",
               rd=R("a", f, 4) + R("a", A_Q5+4*s_, 4) + (R("v", S5, 4) if s_ else []), wr=R("v", S5, 4), prod=("S5", n, s_), exp=e)
        seq.append(it if V.q5 else None)
    for kb in range(2):
        for s_ in range(8):
            f = Kfrag(kb, s_)
            for qt in range(2):
                S = Sblk(n, kb, qt)
                c = "0" if s_ == 0 else vr(S, 4)
                e = {r: ("K", n, kb, s_) for r in R("a", f, 4)}
                seq.append(I(f"{MF} {vr(S,4)}, {ar(f,4)}, {ar(Qfrag(qt,s_),4)}, {c}", "mfma",
                             rd=R("a", f, 4) + R("a", Qfrag(qt, s_), 4) + (R("v", S, 4) if s_ else []), wr=R("v", S, 4), prod=("S", n, kb, qt, s_), exp=e))
    return seq

def pv_mfmas(n, V):
    seq = []
    for i in I_ORDER:
        f = A_V + 4 * i
        for qt in range(2):
            o = O_OWN + 8 * i + 4 * qt; p = Preg(n) + 4 * qt
            e = {r: ("V", n, i) for r in R("a", f, 4)}
            e.update({f"v{p+k}": ("P", n, qt, k) for k in range(4)})
            seq.append(I(f"{MF} {vr(o,4)}, {ar(f,4)}, {vr(p,4)}, {vr(o,4)}", "mfma", rd=R("a", f, 4) + R("v", p, 4) + R("v", o, 4), wr=R("v", o, 4), exp=e))
        if i % 4 == 0:
            for q5 in range(2):
                o = O5 + 8 * (i // 4) + 4 * q5; p = P5Freg(n) + 4 * q5
                e = {r: ("V", n, i) for r in R("a", f, 4)}
                e.update({r: ("P5F", n, q5) for r in R("a", p, 4)})
                it = I(f"{MF} {vr(o,4)}, {ar(f,4)}, {ar(p,4)}, {vr(o,4)}", "mfma", rd=R("a", f, 4) + R("a", p, 4) + R("v", o, 4), wr=R("v", o, 4), exp=e)
                seq.append(it if (q5 == 0 or V.pv9) else None)
    return seq

def softmax_items(regs, mc, l, last, tg, n):
    pass

def softmax_stream(n, V):
    units = []
    for kb in range(2):
        for qt in range(2):
            for r in range(4):
                units.append((kb, qt, r))
    P = Preg(n)
    fma, ex, ad, cv = [], [], [], {}
    for u, (kb, qt, r) in enumerate(units):
        x = Sblk(n, kb, qt) + r
        fma.append(I(f"v_fma_f32 {vr(x)}, {vr(x)}, s{S_C}, -{vr(MC0+qt)}", "valu", rd=[f"v{x}", f"v{MC0+qt}"], wr=[f"v{x}"], prod=("X", n, u), exp={f"v{x}": ("S", n, kb, qt, 7)}))
        ex.append(I(f"v_exp_f32 {vr(x)}, {vr(x)}", "trans", rd=[f"v{x}"], wr=[f"v{x}"], prod=("E", n, u), exp={f"v{x}": ("X", n, u)}))
        ad.append(I(f"v_add_f32 {vr(L0+qt)}, {vr(L0+qt)}, {vr(x)}", "valu", rd=[f"v{x}", f"v{L0+qt}"], wr=[f"v{L0+qt}"], exp={f"v{x}": ("E", n, u)}))
        if r % 2 == 1:
            d = P + 4 * qt + 2 * kb + r // 2
            cv[u] = I(f"v_cvt_pk_bf16_f32 {vr(d)}, {vr(x-1)}, {vr(x)}", "valu", rd=[f"v{x-1}", f"v{x}"], wr=[f"v{d}"], prod=("P", n, qt, 2*kb + r//2),
                      exp={f"v{x-1}": ("E", n, u-1), f"v{x}": ("E", n, u)})
    return dict(F=fma, E=ex, A=ad, C=cv)

def interleave(fma, ex, ad, cv):
    n = len(fma); seq = []
    for r in range(n + 2):
        if r < n: seq.append(fma[r])
        if 0 <= r - 1 < n: seq.append(ex[r-1])
        if 0 <= r - 2 < n:
            seq.append(ad[r-2])
            if (r - 2) in cv: seq.append(cv[r-2])
    return seq

def softmax5_stream(n, V):
    fma, ex, ad, cv = [], [], [], {}
    for r in range(4):
        x = S5 + r
        fma.append(I(f"v_fma_f32 {vr(x)}, {vr(x)}, s{S_C}, -{vr(MC5)}", "valu", rd=[f"v{x}", f"v{MC5}"], wr=[f"v{x}"], prod=("X5", n, r), exp={f"v{x}": ("S5", n, 7)}))
        ex.append(I(f"v_exp_f32 {vr(x)}, {vr(x)}", "trans", rd=[f"v{x}"], wr=[f"v{x}"], prod=("E5", n, r), exp={f"v{x}": ("X5", n, r)}))
        ad.append(I(f"v_add_f32 {vr(L5)}, {vr(L5)}, {vr(x)}", "valu", rd=[f"v{x}", f"v{L5}"], wr=[f"v{L5}"], exp={f"v{x}": ("E5", n, r)}))
        if r % 2 == 1:
            cv[r] = I(f"v_cvt_pk_bf16_f32 {vr(P5OUT+r//2)}, {vr(x-1)}, {vr(x)}", "valu", rd=[f"v{x-1}", f"v{x}"], wr=[f"v{P5OUT+r//2}"], prod=("P5", n, r//2),
                      exp={f"v{x-1}": ("E5", n, r-1), f"v{x}": ("E5", n, r)})
    W = I(f"ds_write_b64 {vr(P5W)}, {vr(P5OUT,2)} offset:{(n%2)*2048}", "lds", rd=R("v", P5OUT, 2), lds="w",
          exp={f"v{P5OUT+k}": ("P5", n, k) for k in range(2)}, mem=("wP", n))
    return dict(F=fma, E=ex, A=ad, C=cv, W=W)

def k_reads(n, V):
    slot = n % 4; seq = []
    for kb in (V.kh, 1 - V.kh):
        for s in range(8):
            f = Kfrag(kb, s)
            seq.append(I(f"ds_read_b128 {ar(f,4)}, {vr(VAK+(s&3))} offset:{slot*16384+kb*8192+(s>>2)*256}", "lds", wr=R("a", f, 4), lds="r", prod=("K", n, kb, s), mem=("rK", n)))
    return seq

def v_reads(n):
    slot = n % 4; seq = []
    for i in I_ORDER:
        f = A_V + 4 * i
        for jj in range(2):
            off = slot*16384 + jj*8192 + (i >> 3)*256
            seq.append(I(f"ds_read_b64_tr_b16 {ar(f+2*jj,2)}, {vr(VAV+(i&7))} offset:{off}", "lds", wr=R("a", f+2*jj, 2), lds="r", prod=("V", n, i), mem=("rV", n)))
    return seq

def p5_reads(n, V):
    return [(I(f"ds_read_b128 {ar(P5Freg(n)+4*q,4)}, {vr(P5R)} offset:{(n%2)*2048+q*1024}", "lds", wr=R("a", P5Freg(n)+4*q, 4), lds="r", prod=("P5F", n, q), mem=("rP", n))
             if (q == 0 or V.pv9) else None) for q in range(2)]

def dma_group(j):
    ks, vs = (j + 5) % 4, (j + 4) % 4
    d = {"MK": I(f"s_add_u32 m0, s{S_WB}, {KBASE+ks*16384}", "salu"), "KO": I(f"s_add_u32 s{S_KOFF}, s{S_KOFF}, 16384", "salu"),
         "MV": I(f"s_add_u32 m0, s{S_WB}, {VBASE+vs*16384}", "salu"), "D": []}
    for i in range(4):
        d["D"].append(I(f"buffer_load_dwordx4 {vr(VOK+i)}, s[{SRD_K}:{SRD_K+3}], s{S_KOFF} offen offset:{i*1024} {opt['kvp']} lds", "dma", mem=("wK", j+5)))
    for i in range(4):
        d["D"].append(I(f"buffer_load_dwordx4 {vr(VOV+i)}, s[{SRD_V}:{SRD_V+3}], s{S_KOFF} offen offset:{i*1024} {opt['kvp']} lds", "dma", mem=("wV", j+4)))
    return d

PAT_B = opt["patb"]
PAT_A = opt["pata"]
assert len(PAT_B) == 40 and len(PAT_A) == 40
def make_schedule():
    pat = PAT_B + PAT_A
    gaps = [[] for _ in range(80)]
    cnt = {}
    posE = {}; posE5 = {}; posD = {}
    for p, t in enumerate(pat):
        if t == "X" or t == "-": continue
        n = cnt.get(t, 0); cnt[t] = n + 1
        key = {"K": "K", "V": "V", "E": "E", "D": "D", "e": "E5", "W": "W"}[t]
        gaps[p].append((key, n))
        if t == "E": posE[n] = p
        if t == "e": posE5[n] = p
        if t == "D": posD[n] = p
    assert cnt == {"K": 18, "V": 32, "E": 16, "D": 8, "e": 4, "W": 1}, cnt
    posW = pat.index("W")
    items = []
    for u in range(16):
        items.append((("F", u), 0 if u < 8 else 4, posE[u] - 1))
        items.append((("A", u), posE[u] + 1, 79))
        if u % 2 == 1: items.append((("C", u), posE[u] + 1, 78))
    for r in range(4):
        items.append((("F5", r), 51, posE5[r] - 1))
        items.append((("A5", r), posE5[r] + 1, 79))
        if r % 2 == 1: items.append((("C5", r), posE5[r] + 1, posW - 1))
    items.append((("MK", 0), 0, posD[0] - 1))
    items.append((("KO", 0), 0, posD[0] - 1))
    items.append((("MV", 0), posD[3] + 1, posD[4] - 1))
    done = set()
    for p in range(80):
        free = 2 - sum(2 if k in ("E", "E5") else 1 for k, _ in gaps[p])
        if pat[p] == "X": free = 0
        if p == 39: free -= 1
        while True:
            cand = [(dl, key) for key, e, dl in items if key not in done and e <= p]
            cand = [c for c in cand if not (c[1][0] in ("A", "A5") and c[1][1] > 0 and (c[1][0], c[1][1] - 1) not in done and False)]
            cand.sort()
            if not cand: break
            dl, key = cand[0]
            if free <= 0 and dl > p: break
            gaps[p].append(key); done.add(key); free -= 1
    assert len(done) == len(items)
    return gaps
SCHED = make_schedule()

def build_step(i, V, qk=True, kr=True, dma=True, sm_next=True, vm=16, bar=True, p5r=True, vr_next=True):
    mA = qk_mfmas(i + 1, V); mB = pv_mfmas(i, V)
    def resolve(key, n):
        k, j = key
        if k == "K":
            it = (k_reads(n + 1, V) + p5_reads(n, V))[KORD[j]]
            if it is None: return None
            if KORD[j] < 16 and not kr: return None
            if KORD[j] >= 16 and not p5r: return None
            return it
        if k == "V": return v_reads(n)[j]
        if k in ("E", "F", "A", "C"): return softmax_stream(n, V)[k][j]
        if k in ("E5", "F5", "A5", "C5"): return softmax5_stream(n + 1, V)[k[0]][j] if (V.q5 and qk) else None
        if k == "W": return softmax5_stream(n + 1, V)["W"] if (V.q5 and qk) else None
        if k == "D": return None if opt["nodma"] else dma_group(n - 1)["D"][j]
        if k in ("MK", "KO", "MV"): return dma_group(n - 1)[k]
    groups = []
    for ph, (ms, p0, n) in enumerate(((mA, 40, i), (mB, 0, i + 1))):
        for g in range(40):
            p = p0 + g; fl = []
            for key in SCHED[p]:
                k = key[0]
                if k in ("D", "MK", "KO", "MV") and not (dma_cur_flag(i, ph, dma)): continue
                if ph == 1 and k in ("E", "F", "A", "C") and not sm_next: continue
                if ph == 1 and k == "V" and not vr_next: continue
                if opt["nolds"] and k in ("K", "V"): continue
                if opt["novalu"] and k in ("E", "F", "A", "C", "E5", "F5", "A5", "C5", "W"): continue
                it = resolve(key, n)
                if it is not None: fl.append(it)
            m = ms[g] if (qk or ph == 1) else None
            if m is None and groups and not (ph == 1 and g == 0): groups[-1][1].extend(fl)
            else: groups.append([m, fl])
            if p == 79:
                w = "s_waitcnt lgkmcnt(0)" if (vm is None or opt["nodma"]) else f"s_waitcnt vmcnt({vm}) lgkmcnt(0)"
                groups.append([None, [I(w, "wait", lds=0), I("s_barrier" if (bar and not opt["nobar"]) else "s_nop 0", "bar")]])
            if p == 39:
                groups.append([None, [I("WAITK", "wait", lds="K")]])
    seq = []
    for m, fl in groups:
        if m is not None: seq.append(m)
        fl = sorted(fl, key=lambda x: 0 if x.kind in ("lds", "dma") else (1 if x.kind in ("salu",) else (3 if x.kind in ("wait", "bar") else 2)))
        seq += fl
    k = max(j for j, x in enumerate(seq) if x.text == "WAITK")
    n_after = 0
    for x in reversed(seq[:k]):
        if x.kind == "lds":
            if x.mem and x.mem[0] == "rV": n_after += 1
            else: break
        if x.kind == "wait": break
    seq[k] = I(f"s_waitcnt lgkmcnt({min(n_after, 15)})", "wait", lds=min(n_after, 15))
    if opt["nomfma"]: seq = [x for x in seq if x.kind != "mfma"]
    return seq
def dma_cur_flag(i, ph, dma):
    return dma[ph]
KORD = list(range(8)) + [16] + list(range(8, 12)) + [17] + list(range(12, 16))

def check_waits(seq):
    pend = []; bad = 0
    for it in seq:
        if it.kind in ("mfma", "valu", "trans") or (it.kind == "lds" and it.lds == "w"):
            for wr in pend:
                if wr & set(it.rd):
                    sys.stderr.write(f"WAIT missing before [{it.text}]\n"); bad += 1
        if it.kind == "lds": pend.append(set(it.wr))
        if it.kind == "wait":
            n = it.lds
            pend = pend[len(pend) - n:] if n else []
    return bad

def check_hazards(seq, name):
    bad = 0
    for i, it in enumerate(seq):
        for d in range(1, 14):
            j = i - d
            if j < 0: break
            pr = seq[j]; between = d - 1
            W = set(pr.wr); msg = None
            if pr.kind == "mfma" and it.kind in ("valu", "trans", "lds") and (W & set(it.rd + it.wr)) and between < 8: msg = "mfma16->valu"
            if pr.kind in ("valu", "trans") and it.kind == "mfma" and (W & set(it.rd)) and between < 2: msg = "valu->mfma"
            if pr.kind == "trans" and it.kind in ("valu", "lds") and (W & set(it.rd)) and between < 1: msg = "trans->valu"
            if pr.kind == "mfma" and it.kind == "mfma" and (W & set(it.rd)) and set(pr.wr) != set(it.wr): msg = "mfma->mfma operand"
            if pr.kind == "salu" and pr.text.startswith("s_add_u32 m0") and it.kind == "dma" and between < 1: msg = "m0->dma"
            if msg and not EXPERIMENT:
                sys.stderr.write(f"HAZARD {name}: {msg}: [{pr.text}] -> [{it.text}] dist {between}\n"); bad += 1
    return bad

def symbolic_check(seqs, first):
    ver = {}; xi = first - 1; errs = 0
    if EXPERIMENT: return 0
    for i, seq in seqs:
        for it in seq:
            for r, e in it.exp.items():
                if r in ver and ver[r] != e:
                    sys.stderr.write(f"SYM it{i}: [{it.text}] {r} has {ver[r]} expected {e}\n"); errs += 1
                elif r not in ver and i > first + 1:
                    sys.stderr.write(f"SYM it{i}: [{it.text}] {r} never written, expected {e}\n"); errs += 1
            if it.prod is not None:
                for r in it.wr: ver[r] = it.prod
            if it.kind == "bar": xi = i
            if it.mem:
                k, n = it.mem
                ok = {"rK": n == xi + 2, "rV": n == xi + 1, "wK": n == xi + 5, "wV": n == xi + 4, "wP": n == xi + 2, "rP": n == xi + 1}[k]
                if not ok:
                    sys.stderr.write(f"SYM it{i}: [{it.text}] mem {it.mem} after X({xi})\n"); errs += 1
            if errs > 20: return errs
    return errs

hdr = [f"; @launch grid=(256,1,1) block=(256,1,1) lds={LDS_BYTES}",
       '.amdgcn_target "amdgcn-amd-amdhsa--gfx950"', ".text", f".globl {NAME}", ".p2align 8",
       f".type {NAME},@function", f"{NAME}:"]
E("s_cmp_ge_u32 s2, 256")
E("s_cbranch_scc1 L_done")
E("s_load_dwordx4 s[4:7], s[0:1], 0")
E("s_load_dwordx4 s[8:11], s[0:1], 16")
if opt["stamps"]:
    E(f"s_load_dwordx2 s[{S_WS}:{S_WS+1}], s[0:1], 40")
    E("s_memrealtime s[60:61]")
    E("s_memtime s[64:65]")
E("s_and_b32 s14, s2, 7")
E("s_lshr_b32 s15, s2, 4")
E("s_lshl_b32 s15, s15, 3")
E("s_add_u32 s14, s14, s15")
E("s_lshr_b32 s15, s2, 3")
E("s_and_b32 s15, s15, 1")
t0, t1, t2, t3, t4, t5, t6, t7 = [T + i for i in range(8)]
LANE, K32, HH, Q16, GG = T + 8, T + 9, T + 10, T + 11, T + 12
E(f"v_lshrrev_b32 {vr(t0)}, 6, v0")
E(f"v_and_b32 {vr(LANE)}, 63, v0")
E(f"v_readfirstlane_b32 s{S_W}, {vr(t0)}")
E(f"v_and_b32 {vr(K32)}, 31, {vr(LANE)}")
E(f"v_lshrrev_b32 {vr(HH)}, 5, {vr(LANE)}")
E(f"v_and_b32 {vr(Q16)}, 15, {vr(LANE)}")
E(f"v_lshrrev_b32 {vr(GG)}, 4, {vr(LANE)}")
E(f"s_lshl_b32 s{S_WB}, s{S_W}, 12")
E(f"s_lshl_b32 s{S_T+1}, s{S_W}, 3")
E(f"v_add_u32 {vr(t0)}, s{S_T+1}, {vr(HH)}")
E(f"v_lshlrev_b32 {vr(t1)}, 9, {vr(t0)}")
for i in range(4):
    E(f"v_add_u32 {vr(t2)}, {2*i}, {vr(t0)}")
    E(f"v_and_b32 {vr(t2)}, 15, {vr(t2)}")
    E(f"v_xor_b32 {vr(t2)}, {vr(t2)}, {vr(K32)}")
    E(f"v_lshl_add_u32 {vr(VOK+i)}, {vr(t2)}, 4, {vr(t1)}")
E("s_waitcnt lgkmcnt(0)")
E(f"s_lshl_b32 s{S_T}, s14, 19")
for srd, src in ((SRD_K, 6), (SRD_V, 8)):
    E(f"s_add_u32 s{srd}, s{src}, s{S_T}")
    E(f"s_addc_u32 s{srd+1}, s{src+1}, 0")
    if srd == SRD_V:
        E(f"s_sub_u32 s{srd}, s{srd}, 16384")
        E(f"s_subb_u32 s{srd+1}, s{srd+1}, 0")
    E(f"s_and_b32 s{srd+1}, s{srd+1}, 0xffff")
    E(f"s_mov_b32 s{srd+2}, {524288 + (16384 if srd == SRD_V else 0)}")
    E(f"s_mov_b32 s{srd+3}, 0x20000")
E(f"s_mul_i32 s{S_T}, s14, 155648")
E(f"s_mul_i32 s{S_T+1}, s15, {160*512}")
E(f"s_add_u32 s{S_T}, s{S_T}, s{S_T+1}")
E(f"s_mul_i32 s{S_T+1}, s15, {16*512}")
E(f"s_sub_u32 s{S_T+1}, {160*512}, s{S_T+1}")
for srd, src in ((SRD_Q, 4), (SRD_O, 10)):
    E(f"s_add_u32 s{srd}, s{src}, s{S_T}")
    E(f"s_addc_u32 s{srd+1}, s{src+1}, 0")
    E(f"s_and_b32 s{srd+1}, s{srd+1}, 0xffff")
    E(f"s_mov_b32 s{srd+2}, s{S_T+1}")
    E(f"s_mov_b32 s{srd+3}, 0x20000")

def dma_tile(ldsaddr, srd, soff, voff4):
    E(f"s_add_u32 m0, s{S_WB}, {ldsaddr}")
    E("s_nop 0")
    for i in range(4):
        pol = opt['qp'] if srd == SRD_Q else opt['kvp']
        E(f"buffer_load_dwordx4 {vr(voff4+i)}, s[{srd}:{srd+3}], {soff} offen offset:{i*1024} {pol} lds")
def dma_K(slot): dma_tile(KBASE + slot*16384, SRD_K, f"s{S_KOFF}", VOK)
def dma_V(slot): dma_tile(VBASE + slot*16384, SRD_V, f"s{S_VOFF}", VOV)
QSTAGE = [KBASE + 2*16384, KBASE + 3*16384, VBASE + 2*16384, VBASE + 3*16384, Q5BASE]

E(f"s_mov_b32 s{S_KOFF}, 0")
dma_K(0)
for t in range(5):
    E(f"s_mov_b32 s{S_T+2}, {t*16384}")
    dma_tile(QSTAGE[t], SRD_Q, f"s{S_T+2}", VOK)
STAMP(0)
for i in range(4):
    E(f"v_add_u32 {vr(t2)}, {2*i}, {vr(HH)}")
    E(f"v_lshlrev_b32 {vr(t2)}, 1, {vr(t2)}")
    E(f"v_xor_b32 {vr(t2)}, {vr(t2)}, {vr(K32)}")
    E(f"v_lshl_add_u32 {vr(VOV+i)}, {vr(t2)}, 4, {vr(t1)}")
E(f"s_mov_b32 s{S_KOFF}, 16384")
dma_K(1)
E(f"s_mov_b32 s{S_VOFF}, 16384")
dma_V(0)
E(f"s_mov_b32 s{S_VOFF}, {2*16384}")
dma_V(1)
E(f"s_mov_b32 s{S_MODE}, 0")
E(f"s_mov_b32 s{S_C}, {CSCALE:#x}")
E(f"s_mov_b32 s{S_THR}, {THR:#x}")
E(f"v_lshlrev_b32 {vr(t1)}, 9, {vr(Q16)}")
for j in range(4):
    E(f"v_add_u32 {vr(t2)}, {4*j}, {vr(GG)}")
    E(f"v_xor_b32 {vr(t2)}, {vr(t2)}, {vr(Q16)}")
    E(f"v_lshl_add_u32 {vr(VAK+j)}, {vr(t2)}, 4, {vr(t1)}")
E(f"v_lshrrev_b32 {vr(t0)}, 2, {vr(LANE)}")
E(f"v_lshlrev_b32 {vr(t1)}, 9, {vr(t0)}")
E(f"v_and_b32 {vr(t2)}, 3, {vr(LANE)}")
E(f"v_lshl_add_u32 {vr(t1)}, {vr(t2)}, 3, {vr(t1)}")
E(f"v_add_u32 {vr(t1)}, {VBASE}, {vr(t1)}")
E(f"v_and_b32 {vr(t0)}, 7, {vr(t0)}")
E(f"v_xor_b32 {vr(t0)}, s{S_W}, {vr(t0)}")
for j in range(8):
    E(f"v_xor_b32 {vr(t2)}, {j}, {vr(t0)}")
    E(f"v_lshl_add_u32 {vr(VAV+j)}, {vr(t2)}, 5, {vr(t1)}")
E(f"v_lshlrev_b32 {vr(t0)}, 4, {vr(LANE)}")
E(f"v_add_u32 {vr(P5R)}, {P5BASE}, {vr(t0)}")
E(f"s_lshr_b32 s{S_T+1}, s{S_W}, 1")
E(f"s_lshl_b32 s{S_T+1}, s{S_T+1}, 10")
E(f"s_and_b32 s{S_T+2}, s{S_W}, 1")
E(f"s_lshl_b32 s{S_T+2}, s{S_T+2}, 3")
E(f"s_add_u32 s{S_T+1}, s{S_T+1}, s{S_T+2}")
E(f"v_add_u32 {vr(P5W)}, s{S_T+1}, {vr(P5R)}")
for r in range(160): E(f"v_mov_b32 {vr(r)}, 0")
for r in (L0, L0 + 1, L5): E(f"v_mov_b32 {vr(r)}, 0")
STAMP(1)
E("s_waitcnt vmcnt(12)")
STAMP(2)
E("s_barrier")
E(f"s_lshl_b32 s{S_T+1}, s{S_W}, 14")
E(f"s_and_b32 s{S_T+2}, s{S_W}, 2")
E(f"s_lshl_b32 s{S_T+2}, s{S_T+2}, 14")
E(f"s_add_u32 s{S_T+1}, s{S_T+1}, s{S_T+2}")
E(f"s_add_u32 s{S_T+1}, s{S_T+1}, {2*16384}")
for j in range(4): E(f"v_add_u32 {vr(t0+j)}, s{S_T+1}, {vr(VAK+j)}")
for qt in range(2):
    for s in range(8):
        E(f"ds_read_b128 {ar(Qfrag(qt,s),4)}, {vr(t0+(s&3))} offset:{qt*8192+(s>>2)*256}")
E(f"s_lshr_b32 s{S_T+1}, s{S_W}, 1")
E(f"s_lshl_b32 s{S_T+1}, s{S_T+1}, 13")
E(f"s_add_u32 s{S_T+1}, s{S_T+1}, {Q5BASE}")
for j in range(4): E(f"v_add_u32 {vr(t4+j)}, s{S_T+1}, {vr(VAK+j)}")
for s in range(8):
    E(f"ds_read_b128 {ar(A_Q5+4*s,4)}, {vr(t4+(s&3))} offset:{(s>>2)*256}")
E("s_waitcnt lgkmcnt(0)")
E("s_barrier")
STAMP(3)
E(f"s_mov_b32 s{S_KOFF}, {2*16384}")
dma_K(2)
E(f"s_mov_b32 s{S_KOFF}, {3*16384}")
dma_K(3)
E(f"s_mov_b32 s{S_VOFF}, {3*16384}")
dma_V(2)
E("s_branch L_first")

LBL("L_restart")
E(f"s_mov_b32 s{S_KOFF}, 0")
dma_K(0)
E(f"s_mov_b32 s{S_KOFF}, 16384")
dma_K(1)
E(f"s_mov_b32 s{S_VOFF}, 16384")
dma_V(0)
E(f"s_mov_b32 s{S_VOFF}, {2*16384}")
dma_V(1)
E(f"s_mov_b32 s{S_KOFF}, {2*16384}")
dma_K(2)
E(f"s_mov_b32 s{S_KOFF}, {3*16384}")
dma_K(3)
E(f"s_mov_b32 s{S_VOFF}, {3*16384}")
dma_V(2)
for r in range(160): E(f"v_mov_b32 {vr(r)}, 0")
for r in (L0, L0 + 1, L5): E(f"v_mov_b32 {vr(r)}, 0")
E("s_waitcnt vmcnt(24)")
E("s_barrier")
LBL("L_first")
S5B = PA
V0 = Var(0, True, True)
def qk_both(slotoff):
    for kb in range(2):
        for s in range(8):
            E(f"ds_read_b128 {ar(Kfrag(kb,s),4)}, {vr(VAK+(s&3))} offset:{slotoff+kb*8192+(s>>2)*256}")
    E("s_waitcnt lgkmcnt(0)")
    for kb in range(2):
        for s in range(8):
            for qt in range(2):
                S = Sblk(0, kb, qt); c = "0" if s == 0 else vr(S, 4)
                E(f"{MF} {vr(S,4)}, {ar(Kfrag(kb,s),4)}, {ar(Qfrag(qt,s),4)}, {c}")
            S = S5 if kb == 0 else S5B; c = "0" if s == 0 else vr(S, 4)
            E(f"{MF} {vr(S,4)}, {ar(Kfrag(kb,s),4)}, {ar(A_Q5+4*s,4)}, {c}")
    E("s_nop 7")
    E("s_nop 1")
qk_both(0)
STAMP(4)
def cross_op(dst, op, tmp):
    E(f"v_mov_b32 {vr(tmp)}, {vr(dst)}")
    E("s_nop 1")
    E(f"v_permlane32_swap_b32 {vr(dst)}, {vr(tmp)}")
    E("s_nop 1")
    E(f"{op} {vr(dst)}, {vr(dst)}, {vr(tmp)}")
    E(f"v_mov_b32 {vr(tmp)}, {vr(dst)}")
    E("s_nop 1")
    E(f"v_permlane16_swap_b32 {vr(dst)}, {vr(tmp)}")
    E("s_nop 1")
    E(f"{op} {vr(dst)}, {vr(dst)}, {vr(tmp)}")
def max8(dst, a, b, init):
    if init:
        E(f"v_max3_f32 {vr(dst)}, {vr(a)}, {vr(a+1)}, {vr(a+2)}")
        E(f"v_max3_f32 {vr(dst)}, {vr(dst)}, {vr(a+3)}, {vr(b)}")
        E(f"v_max3_f32 {vr(dst)}, {vr(dst)}, {vr(b+1)}, {vr(b+2)}")
        E(f"v_max_f32 {vr(dst)}, {vr(dst)}, {vr(b+3)}")
    else:
        for x in (a, a + 2, b, b + 2):
            E(f"v_max3_f32 {vr(dst)}, {vr(dst)}, {vr(x)}, {vr(x+1)}")
E(f"s_cmp_eq_u32 s{S_MODE}, 0")
E("s_cbranch_scc0 L_have_max")
for qt in range(2):
    max8(MC0 + qt, Sblk(0, 0, qt), Sblk(0, 1, qt), True)
max8(MC5, S5, S5B, True)
for r in (MC0, MC0 + 1, MC5):
    cross_op(r, "v_max_f32", t7)
    E(f"v_mul_f32 {vr(r)}, s{S_C}, {vr(r)}")
LBL("L_have_max")
E(f"s_and_b32 s{S_T}, s{S_W}, 1")
E(f"s_cmp_eq_u32 s{S_T}, 0")
E("s_cbranch_scc1 L_s5ok")
for r in range(4): E(f"v_mov_b32 {vr(S5+r)}, {vr(S5B+r)}")
LBL("L_s5ok")
_s5 = softmax5_stream(0, V0)
for r in range(4): E(_s5["F"][r].text)
for r in range(4): E(_s5["E"][r].text)
E("s_nop 0")
for r in range(4): E(_s5["A"][r].text)
for r in (1, 3): E(_s5["C"][r].text)
E(_s5["W"].text)
STAMP(5)
E("s_waitcnt vmcnt(16) lgkmcnt(0)")
STAMP(6)
E("s_barrier")

variants = [Var(0, True, True), Var(1, True, True)]
if opt["skip9"]:
    variants += [Var(0, True, False), Var(1, True, False), Var(0, False, False)]
E(f"s_and_b32 s{S_T}, s{S_W}, 1")
if opt["skip9"]:
    E(f"s_cmp_eq_u32 s15, 0")
    E("s_cbranch_scc1 L_disp_full")
    E(f"s_cmp_ge_u32 s{S_W}, 2")
    E(f"s_cbranch_scc1 L_var_{variants[4].name}")
    E(f"s_cmp_eq_u32 s{S_T}, 0")
    E(f"s_cbranch_scc1 L_var_{variants[2].name}")
    E(f"s_branch L_var_{variants[3].name}")
    LBL("L_disp_full")
E(f"s_cmp_eq_u32 s{S_T}, 1")
E(f"s_cbranch_scc1 L_var_{variants[1].name}")

totE = totH = totW = 0
for V in variants:
    def step_for(i):
        if i <= 27: return build_step(i, V, dma=(True, True))
        if i == 28: return build_step(i, V, dma=(True, False))
        if i == 29: return build_step(i, V, dma=(False, False), vm=8)
        if i == 30: return build_step(i, V, dma=(False, False), kr=False, vm=0)
        if i == 31: return build_step(i, V, qk=False, kr=False, dma=(False, False), sm_next=False, bar=False, p5r=False, vm=None, vr_next=False)
    allsteps = [step_for(i) for i in range(32)]
    pro = build_step(-1, V, dma=(True, True))
    xi = max(k for k, it in enumerate(pro) if it.kind == "bar")
    pro_tail = [it for it in pro[xi + 1:] if it.kind != "mfma"]
    totE += symbolic_check([(-1, [I("", "bar")] + pro_tail)] + [(i, s) for i, s in enumerate(allsteps)], -1)
    LBL(f"L_var_{V.name}")
    for it in pro_tail:
        E(it.text)
        if it.kind in ("trans", "salu"): E("s_nop 0")
    E(f"s_mov_b32 s{S_IT}, 0")
    if opt["stamps"]:
        E("s_memtime s[66:67]")
        E("s_memrealtime s[56:57]")
        E("s_waitcnt lgkmcnt(0)")
    out.append(".p2align 6")
    LBL(f"L_loop_{V.name}")
    for st in range(4):
        prev = build_step(st + 3, V, dma=(True, True)); seq = build_step(st + 4, V, dma=(True, True))
        totH += check_hazards(prev[-14:] + seq, f"{V.name}.step{st}")
        if not EXPERIMENT: totW += check_waits(prev + seq)
        for it in seq: E(it.text)
    E(f"s_add_u32 s{S_IT}, s{S_IT}, 1")
    E(f"s_cmp_lt_u32 s{S_IT}, 7")
    E(f"s_cbranch_scc1 L_loop_{V.name}")
    for i in range(28, 32):
        prev = allsteps[i - 1]; seq = allsteps[i]
        fixed = []
        for it in seq:
            if it.kind == "mfma" and any(x.kind in ("valu", "trans") and set(x.wr) & set(it.rd) for x in fixed[-2:]): fixed.append(I("s_nop 1", "salu"))
            if it.kind in ("valu", "lds") and fixed and fixed[-1].kind == "trans": fixed.append(I("s_nop 0", "salu"))
            if it.kind == "dma" and fixed and fixed[-1].text.startswith("s_add_u32 m0"): fixed.append(I("s_nop 0", "salu"))
            fixed.append(it)
        seq = fixed
        totH += check_hazards(prev[-14:] + seq, f"{V.name}.tail{i}")
        if not EXPERIMENT: totW += check_waits(prev + seq)
        for it in seq: E(it.text)
    if V is not variants[-1]: E("s_branch L_epi")
    if opt["verbose"]:
        if V is variants[0]:
            pat = PAT_B + PAT_A; over = 0
            for p in range(80):
                c = sum(2 if k in ("E", "E5") else 1 for k, _ in SCHED[p]); over += max(0, c - 2)
                sys.stderr.write(f"p {p:2d} {pat[p]} {c} {'OVER' if c > 2 else '    '} " + " ".join(f"{k}{j}" for k, j in SCHED[p]) + "\n")
            sys.stderr.write(f"overflow {over}\n")
        sys.stderr.write(f"variant {V.name}: instrs/step {len(build_step(4, V, dma=(True, True)))}\n")
assert EXPERIMENT or (totE == 0 and totH == 0 and totW == 0), (totE, totH, totW)

LBL("L_epi")
if opt["stamps"]:
    E("s_memtime s[68:69]")
    E("s_memrealtime s[58:59]")
E("s_waitcnt vmcnt(0) lgkmcnt(0)")
E("s_nop 7")
for r in (L0, L0 + 1, L5): cross_op(r, "v_add_f32", t7)
E(f"v_mbcnt_lo_u32_b32 {vr(LANE)}, -1, 0")
E(f"v_mbcnt_hi_u32_b32 {vr(LANE)}, -1, {vr(LANE)}")
E(f"v_and_b32 {vr(Q16)}, 15, {vr(LANE)}")
E(f"v_lshrrev_b32 {vr(GG)}, 4, {vr(LANE)}")
E(f"s_lshr_b32 s{S_T}, s{S_W}, 1")
E(f"s_lshl_b32 s{S_T}, s{S_T}, 7")
E(f"s_and_b32 s{S_T+1}, s{S_W}, 1")
E(f"s_lshl_b32 s{S_T+1}, s{S_T+1}, 6")
E(f"s_add_u32 s{S_T}, s{S_T}, s{S_T+1}")
E(f"s_add_u32 s{S_T}, s{S_T}, {XBASE}")
E(f"v_lshlrev_b32 {vr(t0)}, 2, {vr(Q16)}")
E(f"v_add_u32 {vr(t1)}, s{S_T}, {vr(t0)}")
E(f"ds_write_b32 {vr(t1)}, {vr(L5)}")
E(f"v_max3_f32 {vr(t1)}, {vr(L0)}, {vr(L0+1)}, {vr(L5)}")
E(f"v_cmp_lt_f32 vcc, s{S_THR}, {vr(t1)}")
E("s_nop 4")
E("s_cmp_lg_u64 vcc, 0")
E(f"s_cselect_b32 s{S_T+2}, 1, 0")
E(f"v_mov_b32 {vr(t1)}, s{S_T+2}")
E(f"s_lshl_b32 s{S_T+3}, s{S_W}, 2")
E(f"s_add_u32 s{S_T+3}, s{S_T+3}, {XBASE+256}")
E(f"v_mov_b32 {vr(t2)}, s{S_T+3}")
E(f"ds_write_b32 {vr(t2)}, {vr(t1)}")
E("s_waitcnt lgkmcnt(0)")
E("s_barrier")
E(f"v_add_u32 {vr(t0)}, {XBASE}, {vr(t0)}")
E(f"ds_read_b32 {vr(t1)}, {vr(t0)}")
E(f"ds_read_b32 {vr(t2)}, {vr(t0)} offset:64")
E(f"ds_read_b32 {vr(t3)}, {vr(t0)} offset:128")
E(f"ds_read_b32 {vr(t4)}, {vr(t0)} offset:192")
E(f"v_mov_b32 {vr(t5)}, {XBASE+256}")
E(f"ds_read_b128 {vr(PA,4)}, {vr(t5)}")
E("s_waitcnt lgkmcnt(0)")
E(f"v_or_b32 {vr(PA)}, {vr(PA)}, {vr(PA+1)}")
E(f"v_or3_b32 {vr(PA)}, {vr(PA)}, {vr(PA+2)}, {vr(PA+3)}")
L8, L9 = MC0 + 0, MC0 + 1
E(f"v_add_f32 {vr(t1)}, {vr(t1)}, {vr(t2)}")
E(f"v_readfirstlane_b32 s{S_T}, {vr(PA)}")
E(f"v_add_f32 {vr(t3)}, {vr(t3)}, {vr(t4)}")
E("s_nop 3")
E(f"s_cmp_lg_u32 s{S_MODE}, 0")
E("s_cbranch_scc1 L_final")
E(f"s_cmp_lg_u32 s{S_T}, 0")
E("s_cbranch_scc1 L_maxpass")
LBL("L_final")
STAMP(7)
R8, R9 = t1, t3
E(f"v_rcp_f32 {vr(L0)}, {vr(L0)}")
E(f"v_rcp_f32 {vr(L0+1)}, {vr(L0+1)}")
E(f"v_rcp_f32 {vr(R8)}, {vr(R8)}")
E(f"v_rcp_f32 {vr(R9)}, {vr(R9)}")
EA = SA
E(f"v_and_b32 {vr(t4)}, 1, {vr(GG)}")
E(f"v_lshlrev_b32 {vr(t4)}, 1, {vr(t4)}")
E(f"v_lshrrev_b32 {vr(t5)}, 1, {vr(GG)}")
E(f"v_xor_b32 {vr(t6)}, {vr(t4)}, {vr(t5)}")
E(f"s_lshl_b32 s{S_T}, s{S_W}, 1")
E(f"v_xor_b32 {vr(t6)}, s{S_T}, {vr(t6)}")
E(f"v_xor_b32 {vr(t6)}, {vr(t6)}, {vr(Q16)}")
E(f"v_lshlrev_b32 {vr(t7)}, 9, {vr(Q16)}")
E(f"s_lshl_b32 s{S_T+1}, s{S_W}, 14")
E(f"v_add_u32 {vr(t0)}, s{S_T+1}, {vr(t7)}")
for j in range(4):
    E(f"v_xor_b32 {vr(t2)}, {4*j}, {vr(t6)}")
    E(f"v_lshl_add_u32 {vr(EA+j)}, {vr(t2)}, 4, {vr(t0)}")
E(f"v_lshlrev_b32 {vr(t4)}, 2, {vr(t4)}")
E(f"v_add_u32 {vr(t4)}, {vr(t4)}, {vr(t5)}")
E(f"v_add_u32 {vr(t4)}, s{S_T}, {vr(t4)}")
E(f"v_xor_b32 {vr(t4)}, {vr(t4)}, {vr(Q16)}")
E(f"v_lshl_add_u32 {vr(EA+4)}, {vr(t4)}, 4, {vr(t7)}")
E(f"v_add_u32 {vr(EA+4)}, {VBASE}, {vr(EA+4)}")
def stage_pair(a, b, rinv, addr, off):
    for r in range(4):
        E(f"v_mul_f32 {vr(a+r)}, {vr(a+r)}, {vr(rinv)}")
        E(f"v_mul_f32 {vr(b+r)}, {vr(b+r)}, {vr(rinv)}")
    E(f"v_cvt_pk_bf16_f32 {vr(a)}, {vr(a)}, {vr(a+1)}")
    E(f"v_cvt_pk_bf16_f32 {vr(a+1)}, {vr(a+2)}, {vr(a+3)}")
    E(f"v_cvt_pk_bf16_f32 {vr(a+2)}, {vr(b)}, {vr(b+1)}")
    E(f"v_cvt_pk_bf16_f32 {vr(a+3)}, {vr(b+2)}, {vr(b+3)}")
    E("s_nop 1")
    E(f"v_permlane16_swap_b32 {vr(a)}, {vr(a+2)}")
    E(f"v_permlane16_swap_b32 {vr(a+1)}, {vr(a+3)}")
    E(f"ds_write_b128 {vr(addr)}, {vr(a,4)} offset:{off}")
for qt in range(2):
    for i in range(0, 16, 2):
        stage_pair(O_OWN + 8*i + 4*qt, O_OWN + 8*(i+1) + 4*qt, L0 + qt, EA + ((i >> 1) & 3), qt*8192 + (i >> 3)*256)
for q5 in range(2):
    for k in (0, 2):
        stage_pair(O5 + 8*k + 4*q5, O5 + 8*(k+1) + 4*q5, (R8, R9)[q5], EA + 4, q5*8192 + (k >> 1)*256)
E("s_waitcnt lgkmcnt(0)")
E("s_barrier")
STAMP(8)
E(f"v_lshlrev_b32 {vr(t0)}, 4, {vr(LANE)}")
E(f"v_add_u32 {vr(t0)}, s{S_WB}, {vr(t0)}")
E(f"v_add_u32 {vr(t1)}, {VBASE}, {vr(t0)}")
for t in range(5):
    for i in range(4):
        a = t0 if t < 4 else t1
        off = (t*16384 if t < 4 else 0) + i*1024
        E(f"ds_read_b128 {vr(16*t+4*i,4)}, {vr(a)} offset:{off}")
for t in range(5):
    E(f"s_mov_b32 s{S_T}, {t*16384}")
    for i in range(4):
        E(f"s_waitcnt lgkmcnt({min(15, 19-(4*t+i))})")
        E(f"buffer_store_dwordx4 {vr(16*t+4*i,4)}, {vr(VOK+i)}, s[{SRD_O}:{SRD_O+3}], s{S_T} offen offset:{i*1024} {opt['op']}")
if opt["stamps"]:
    E("s_waitcnt vmcnt(0)")
    E("s_memrealtime s[62:63]")
    E("s_memtime s[70:71]")
    E("s_waitcnt lgkmcnt(0)")
    E(f"s_mov_b32 s72, s{S_WS}")
    E(f"s_and_b32 s73, s{S_WS+1}, 0xffff")
    E("s_mov_b32 s74, 262144")
    E("s_mov_b32 s75, 0x20000")
    E("s_sub_u32 s66, s66, s64")
    E("s_sub_u32 s68, s68, s64")
    E("s_sub_u32 s70, s70, s64")
    for k, sreg in enumerate((60, 61, 62, 63)): E(f"v_mov_b32 v{k}, s{sreg}")
    E("v_mov_b32 v4, s66"); E("v_mov_b32 v5, s68"); E("v_mov_b32 v6, s70"); E("s_sub_u32 s58, s58, s56"); E("v_mov_b32 v7, s58")
    E("s_lshl_b32 s76, s2, 6")
    E(f"s_lshl_b32 s77, s{S_W}, 4")
    E("s_add_u32 s76, s76, s77")
    E("v_mov_b32 v8, s76")
    E(f"v_cmp_eq_u32 vcc, 0, {vr(LANE)}")
    E("s_and_saveexec_b64 s[78:79], vcc")
    E("buffer_store_dwordx4 v[0:3], v8, s[72:75], 0 offen")
    E("v_add_u32 v8, 0x8000, v8")
    E("buffer_store_dwordx4 v[4:7], v8, s[72:75], 0 offen")
    for q in range(3):
        for k in range(4):
            kk = q*4+k
            if kk < 9:
                E(f"s_sub_u32 s{80+2*kk}, s{80+2*kk}, s64")
                E(f"v_mov_b32 v{12+k}, s{80+2*kk}")
        E(f"v_add_u32 v8, 0x4000, v8")
        E("s_nop 1")
        E("buffer_store_dwordx4 v[12:15], v8, s[72:75], 0 offen")
E("s_endpgm")

LBL("L_maxpass")
E(f"s_mov_b32 s{S_MODE}, 1")
for r in (MC0, MC0 + 1, MC5): E(f"v_mov_b32 {vr(r)}, 0xff800000")
E(f"s_mov_b32 s{S_KOFF}, 0")
LBL("L_maxloop")
E("s_barrier")
dma_K(0)
E("s_waitcnt vmcnt(0)")
E("s_barrier")
qk_both(0)
for qt in range(2): max8(MC0 + qt, Sblk(0, 0, qt), Sblk(0, 1, qt), False)
max8(MC5, S5, S5B, False)
E(f"s_add_u32 s{S_KOFF}, s{S_KOFF}, 16384")
E(f"s_cmp_lt_u32 s{S_KOFF}, 524288")
E("s_cbranch_scc1 L_maxloop")
for r in (MC0, MC0 + 1, MC5):
    cross_op(r, "v_max_f32", t7)
    E(f"v_mul_f32 {vr(r)}, s{S_C}, {vr(r)}")
E("s_barrier")
E("s_branch L_restart")
LBL("L_done")
E("s_endpgm")

tail = ['.section .rodata,"a"', ".p2align 6", f".amdhsa_kernel {NAME}",
        "  .amdhsa_next_free_vgpr 512", "  .amdhsa_next_free_sgpr 102", "  .amdhsa_accum_offset 256",
        "  .amdhsa_group_segment_fixed_size 0", "  .amdhsa_kernarg_size 48", "  .amdhsa_user_sgpr_count 2",
        "  .amdhsa_user_sgpr_kernarg_segment_ptr 1", "  .amdhsa_system_sgpr_workgroup_id_x 1", ".end_amdhsa_kernel"]
print("\n".join(hdr + out + tail))
```

```python
import sys, struct

opt = dict(kvp="nt", qp="nt", op="nt", stamps=0, verbose=0,
           vr0=0, vr1=33, s5a=27, s5b=37, kr0=40, kr1=72, dma0=41, dma1=78, sm0=41, sm1=37,
           nodma=0, nolds=0, novalu=0, nobar=0, nomfma=0, skip9=0,
           patb="KEKKKEKDKEKKVKEKDKEKVKKEKDKEKVKVEVDVEVVV",
           pata="VEVVDVEVVVEVVeVeVDeVeVVWEVVVEVVVVVVEDEDX")
for a in sys.argv[1:]:
    k, v = a.split("=", 1)
    opt[k] = type(opt[k])(v)
EXPERIMENT = opt["nodma"] or opt["nolds"] or opt["novalu"] or opt["nobar"] or opt["nomfma"]

def f2u(x): return struct.unpack("<I", struct.pack("<f", x))[0]
CSCALE = f2u(1.4426950408889634 / 16.0)
THR = f2u(2.0 ** 30)
NAME = "standalone__mha_softmax__near_ridge_kernel"

O_OWN = 0; O5 = 128; SA = 160; SB = 176; S5 = 192; PA = 196; PB = 204; P5OUT = 212
L0 = 214; L5 = 216; MC0 = 217; MC5 = 219
VAK = 220; VAV = 224; VOK = 232; VOV = 236; P5W = 240; P5R = 241
T = 242
A_V = 0; A_K = 64; A_Q = 128; A_Q5 = 192; A_P5F = 224
KBASE = 0; VBASE = 65536; P5BASE = 131072; XBASE = 135168; Q5BASE = 136192; LDS_BYTES = 152576
S_W = 16
SRD_K = 20; SRD_V = 24; SRD_Q = 28; SRD_O = 32
S_KOFF = 36; S_VOFF = 37; S_WB = 38; S_C = 39; S_IT = 40; S_MODE = 41; S_THR = 42; S_HALF = 15
S_T = 48
S_WS = 12

out = []
def E(s): out.append("  " + s)
def LBL(s): out.append(s + ":")
def STAMP(k):
    if opt["stamps"]: out.append(f"  s_memtime s[{80+2*k}:{81+2*k}]")
def vr(b, n=1): return f"v{b}" if n == 1 else f"v[{b}:{b+n-1}]"
def ar(b, n=1): return f"a{b}" if n == 1 else f"a[{b}:{b+n-1}]"
def R(pref, b, n): return [f"{pref}{b+i}" for i in range(n)]

class I:
    def __init__(s, text, kind, rd=(), wr=(), lds=None, prod=None, exp=None, mem=None):
        s.text, s.kind, s.rd, s.wr, s.lds = text, kind, list(rd), list(wr), lds
        s.prod = prod; s.exp = exp or {}; s.mem = mem
        s.slots = 2 if kind == "trans" else 1

def Sreg(n): return SA if n % 2 == 0 else SB
def Preg(n): return PA if n % 2 == 0 else PB
def P5Freg(n): return A_P5F + 8 * (n % 2)
def Sblk(n, kb, qt): return Sreg(n) + 8 * kb + 4 * qt
def Kfrag(kb, s): return A_K + 4 * (8 * kb + s)
def Qfrag(qt, s): return A_Q + 32 * qt + 4 * s
I_ORDER = [1, 2, 3, 5, 6, 7, 9, 10, 11, 13, 14, 15, 0, 4, 8, 12]
MF = "v_mfma_f32_16x16x32_bf16"

class Var:
    def __init__(s, kh, q5, pv9): s.kh, s.q5, s.pv9 = kh, q5, pv9; s.name = f"k{kh}q{int(q5)}p{int(pv9)}"

def qk_mfmas(n, V, full=False):
    seq = []
    for s_ in range(8):
        f = Kfrag(V.kh, s_)
        c = "0" if s_ == 0 else vr(S5, 4)
        e = {r: ("K", n, V.kh, s_) for r in R("a", f, 4)}
        it = I(f"{MF} {vr(S5,4)}, {ar(f,4)}, {ar(A_Q5+4*s_,4)}, {c}", "mfma",
               rd=R("a", f, 4) + R("a", A_Q5+4*s_, 4) + (R("v", S5, 4) if s_ else []), wr=R("v", S5, 4), prod=("S5", n, s_), exp=e)
        seq.append(it if V.q5 else None)
    for kb in range(2):
        for s_ in range(8):
            f = Kfrag(kb, s_)
            for qt in range(2):
                S = Sblk(n, kb, qt)
                c = "0" if s_ == 0 else vr(S, 4)
                e = {r: ("K", n, kb, s_) for r in R("a", f, 4)}
                seq.append(I(f"{MF} {vr(S,4)}, {ar(f,4)}, {ar(Qfrag(qt,s_),4)}, {c}", "mfma",
                             rd=R("a", f, 4) + R("a", Qfrag(qt, s_), 4) + (R("v", S, 4) if s_ else []), wr=R("v", S, 4), prod=("S", n, kb, qt, s_), exp=e))
    return seq

def pv_mfmas(n, V):
    seq = []
    for i in I_ORDER:
        f = A_V + 4 * i
        for qt in range(2):
            o = O_OWN + 8 * i + 4 * qt; p = Preg(n) + 4 * qt
            e = {r: ("V", n, i) for r in R("a", f, 4)}
            e.update({f"v{p+k}": ("P", n, qt, k) for k in range(4)})
            seq.append(I(f"{MF} {vr(o,4)}, {ar(f,4)}, {vr(p,4)}, {vr(o,4)}", "mfma", rd=R("a", f, 4) + R("v", p, 4) + R("v", o, 4), wr=R("v", o, 4), exp=e))
        if i % 4 == 0:
            for q5 in range(2):
                o = O5 + 8 * (i // 4) + 4 * q5; p = P5Freg(n) + 4 * q5
                e = {r: ("V", n, i) for r in R("a", f, 4)}
                e.update({r: ("P5F", n, q5) for r in R("a", p, 4)})
                it = I(f"{MF} {vr(o,4)}, {ar(f,4)}, {ar(p,4)}, {vr(o,4)}", "mfma", rd=R("a", f, 4) + R("a", p, 4) + R("v", o, 4), wr=R("v", o, 4), exp=e)
                seq.append(it if (q5 == 0 or V.pv9) else None)
    return seq

def softmax_items(regs, mc, l, last, tg, n):
    pass

def softmax_stream(n, V):
    units = []
    for kb in range(2):
        for qt in range(2):
            for r in range(4):
                units.append((kb, qt, r))
    P = Preg(n)
    fma, ex, ad, cv = [], [], [], {}
    for u, (kb, qt, r) in enumerate(units):
        x = Sblk(n, kb, qt) + r
        fma.append(I(f"v_fma_f32 {vr(x)}, {vr(x)}, s{S_C}, -{vr(MC0+qt)}", "valu", rd=[f"v{x}", f"v{MC0+qt}"], wr=[f"v{x}"], prod=("X", n, u), exp={f"v{x}": ("S", n, kb, qt, 7)}))
        ex.append(I(f"v_exp_f32 {vr(x)}, {vr(x)}", "trans", rd=[f"v{x}"], wr=[f"v{x}"], prod=("E", n, u), exp={f"v{x}": ("X", n, u)}))
        ad.append(I(f"v_add_f32 {vr(L0+qt)}, {vr(L0+qt)}, {vr(x)}", "valu", rd=[f"v{x}", f"v{L0+qt}"], wr=[f"v{L0+qt}"], exp={f"v{x}": ("E", n, u)}))
        if r % 2 == 1:
            d = P + 4 * qt + 2 * kb + r // 2
            cv[u] = I(f"v_cvt_pk_bf16_f32 {vr(d)}, {vr(x-1)}, {vr(x)}", "valu", rd=[f"v{x-1}", f"v{x}"], wr=[f"v{d}"], prod=("P", n, qt, 2*kb + r//2),
                      exp={f"v{x-1}": ("E", n, u-1), f"v{x}": ("E", n, u)})
    return dict(F=fma, E=ex, A=ad, C=cv)

def interleave(fma, ex, ad, cv):
    n = len(fma); seq = []
    for r in range(n + 2):
        if r < n: seq.append(fma[r])
        if 0 <= r - 1 < n: seq.append(ex[r-1])
        if 0 <= r - 2 < n:
            seq.append(ad[r-2])
            if (r - 2) in cv: seq.append(cv[r-2])
    return seq

def softmax5_stream(n, V):
    fma, ex, ad, cv = [], [], [], {}
    for r in range(4):
        x = S5 + r
        fma.append(I(f"v_fma_f32 {vr(x)}, {vr(x)}, s{S_C}, -{vr(MC5)}", "valu", rd=[f"v{x}", f"v{MC5}"], wr=[f"v{x}"], prod=("X5", n, r), exp={f"v{x}": ("S5", n, 7)}))
        ex.append(I(f"v_exp_f32 {vr(x)}, {vr(x)}", "trans", rd=[f"v{x}"], wr=[f"v{x}"], prod=("E5", n, r), exp={f"v{x}": ("X5", n, r)}))
        ad.append(I(f"v_add_f32 {vr(L5)}, {vr(L5)}, {vr(x)}", "valu", rd=[f"v{x}", f"v{L5}"], wr=[f"v{L5}"], exp={f"v{x}": ("E5", n, r)}))
        if r % 2 == 1:
            cv[r] = I(f"v_cvt_pk_bf16_f32 {vr(P5OUT+r//2)}, {vr(x-1)}, {vr(x)}", "valu", rd=[f"v{x-1}", f"v{x}"], wr=[f"v{P5OUT+r//2}"], prod=("P5", n, r//2),
                      exp={f"v{x-1}": ("E5", n, r-1), f"v{x}": ("E5", n, r)})
    W = I(f"ds_write_b64 {vr(P5W)}, {vr(P5OUT,2)} offset:{(n%2)*2048}", "lds", rd=R("v", P5OUT, 2), lds="w",
          exp={f"v{P5OUT+k}": ("P5", n, k) for k in range(2)}, mem=("wP", n))
    return dict(F=fma, E=ex, A=ad, C=cv, W=W)

def k_reads(n, V):
    slot = n % 4; seq = []
    for kb in (V.kh, 1 - V.kh):
        for s in range(8):
            f = Kfrag(kb, s)
            seq.append(I(f"ds_read_b128 {ar(f,4)}, {vr(VAK+(s&3))} offset:{slot*16384+kb*8192+(s>>2)*256}", "lds", wr=R("a", f, 4), lds="r", prod=("K", n, kb, s), mem=("rK", n)))
    return seq

def v_reads(n):
    slot = n % 4; seq = []
    for i in I_ORDER:
        f = A_V + 4 * i
        for jj in range(2):
            off = slot*16384 + jj*8192 + (i >> 3)*256
            seq.append(I(f"ds_read_b64_tr_b16 {ar(f+2*jj,2)}, {vr(VAV+(i&7))} offset:{off}", "lds", wr=R("a", f+2*jj, 2), lds="r", prod=("V", n, i), mem=("rV", n)))
    return seq

def p5_reads(n, V):
    return [(I(f"ds_read_b128 {ar(P5Freg(n)+4*q,4)}, {vr(P5R)} offset:{(n%2)*2048+q*1024}", "lds", wr=R("a", P5Freg(n)+4*q, 4), lds="r", prod=("P5F", n, q), mem=("rP", n))
             if (q == 0 or V.pv9) else None) for q in range(2)]

def dma_group(j):
    ks, vs = (j + 5) % 4, (j + 4) % 4
    d = {"MK": I(f"s_add_u32 m0, s{S_WB}, {KBASE+ks*16384}", "salu"), "KO": I(f"s_add_u32 s{S_KOFF}, s{S_KOFF}, 16384", "salu"),
         "MV": I(f"s_add_u32 m0, s{S_WB}, {VBASE+vs*16384}", "salu"), "D": []}
    for i in range(4):
        d["D"].append(I(f"buffer_load_dwordx4 {vr(VOK+i)}, s[{SRD_K}:{SRD_K+3}], s{S_KOFF} offen offset:{i*1024} {opt['kvp']} lds", "dma", mem=("wK", j+5)))
    for i in range(4):
        d["D"].append(I(f"buffer_load_dwordx4 {vr(VOV+i)}, s[{SRD_V}:{SRD_V+3}], s{S_KOFF} offen offset:{i*1024} {opt['kvp']} lds", "dma", mem=("wV", j+4)))
    return d

PAT_B = opt["patb"]
PAT_A = opt["pata"]
assert len(PAT_B) == 40 and len(PAT_A) == 40
def make_schedule():
    pat = PAT_B + PAT_A
    gaps = [[] for _ in range(80)]
    cnt = {}
    posE = {}; posE5 = {}; posD = {}
    for p, t in enumerate(pat):
        if t == "X" or t == "-": continue
        n = cnt.get(t, 0); cnt[t] = n + 1
        key = {"K": "K", "V": "V", "E": "E", "D": "D", "e": "E5", "W": "W"}[t]
        gaps[p].append((key, n))
        if t == "E": posE[n] = p
        if t == "e": posE5[n] = p
        if t == "D": posD[n] = p
    assert cnt == {"K": 18, "V": 32, "E": 16, "D": 8, "e": 4, "W": 1}, cnt
    posW = pat.index("W")
    items = []
    for u in range(16):
        items.append((("F", u), 0 if u < 8 else 4, posE[u] - 1))
        items.append((("A", u), posE[u] + 1, 79))
        if u % 2 == 1: items.append((("C", u), posE[u] + 1, 78))
    for r in range(4):
        items.append((("F5", r), 51, posE5[r] - 1))
        items.append((("A5", r), posE5[r] + 1, 79))
        if r % 2 == 1: items.append((("C5", r), posE5[r] + 1, posW - 1))
    items.append((("MK", 0), 0, posD[0] - 1))
    items.append((("KO", 0), 0, posD[0] - 1))
    items.append((("MV", 0), posD[3] + 1, posD[4] - 1))
    done = set()
    for p in range(80):
        free = 2 - sum(2 if k in ("E", "E5") else 1 for k, _ in gaps[p])
        if pat[p] == "X": free = 0
        if p == 39: free -= 1
        while True:
            cand = [(dl, key) for key, e, dl in items if key not in done and e <= p]
            cand = [c for c in cand if not (c[1][0] in ("A", "A5") and c[1][1] > 0 and (c[1][0], c[1][1] - 1) not in done and False)]
            cand.sort()
            if not cand: break
            dl, key = cand[0]
            if free <= 0 and dl > p: break
            gaps[p].append(key); done.add(key); free -= 1
    assert len(done) == len(items)
    return gaps
SCHED = make_schedule()

def build_step(i, V, qk=True, kr=True, dma=True, sm_next=True, vm=16, bar=True, p5r=True, vr_next=True):
    mA = qk_mfmas(i + 1, V); mB = pv_mfmas(i, V)
    def resolve(key, n):
        k, j = key
        if k == "K":
            it = (k_reads(n + 1, V) + p5_reads(n, V))[KORD[j]]
            if it is None: return None
            if KORD[j] < 16 and not kr: return None
            if KORD[j] >= 16 and not p5r: return None
            return it
        if k == "V": return v_reads(n)[j]
        if k in ("E", "F", "A", "C"): return softmax_stream(n, V)[k][j]
        if k in ("E5", "F5", "A5", "C5"): return softmax5_stream(n + 1, V)[k[0]][j] if (V.q5 and qk) else None
        if k == "W": return softmax5_stream(n + 1, V)["W"] if (V.q5 and qk) else None
        if k == "D": return None if opt["nodma"] else dma_group(n - 1)["D"][j]
        if k in ("MK", "KO", "MV"): return dma_group(n - 1)[k]
    groups = []
    for ph, (ms, p0, n) in enumerate(((mA, 40, i), (mB, 0, i + 1))):
        for g in range(40):
            p = p0 + g; fl = []
            for key in SCHED[p]:
                k = key[0]
                if k in ("D", "MK", "KO", "MV") and not (dma_cur_flag(i, ph, dma)): continue
                if ph == 1 and k in ("E", "F", "A", "C") and not sm_next: continue
                if ph == 1 and k == "V" and not vr_next: continue
                if opt["nolds"] and k in ("K", "V"): continue
                if opt["novalu"] and k in ("E", "F", "A", "C", "E5", "F5", "A5", "C5", "W"): continue
                it = resolve(key, n)
                if it is not None: fl.append(it)
            m = ms[g] if (qk or ph == 1) else None
            if m is None and groups and not (ph == 1 and g == 0): groups[-1][1].extend(fl)
            else: groups.append([m, fl])
            if p == 79:
                w = "s_waitcnt lgkmcnt(0)" if (vm is None or opt["nodma"]) else f"s_waitcnt vmcnt({vm}) lgkmcnt(0)"
                groups.append([None, [I(w, "wait", lds=0), I("s_barrier" if (bar and not opt["nobar"]) else "s_nop 0", "bar")]])
            if p == 39:
                groups.append([None, [I("WAITK", "wait", lds="K")]])
    seq = []
    for m, fl in groups:
        if m is not None: seq.append(m)
        fl = sorted(fl, key=lambda x: 0 if x.kind in ("lds", "dma") else (1 if x.kind in ("salu",) else (3 if x.kind in ("wait", "bar") else 2)))
        seq += fl
    k = max(j for j, x in enumerate(seq) if x.text == "WAITK")
    n_after = 0
    for x in reversed(seq[:k]):
        if x.kind == "lds":
            if x.mem and x.mem[0] == "rV": n_after += 1
            else: break
        if x.kind == "wait": break
    seq[k] = I(f"s_waitcnt lgkmcnt({min(n_after, 15)})", "wait", lds=min(n_after, 15))
    if opt["nomfma"]: seq = [x for x in seq if x.kind != "mfma"]
    return seq
def dma_cur_flag(i, ph, dma):
    return dma[ph]
KORD = list(range(8)) + [16] + list(range(8, 12)) + [17] + list(range(12, 16))

def pad_fix(seq, prefix=()):
    fixed = list(prefix); npre = len(fixed)
    k = 0; seq = list(seq)
    while k < len(seq):
        it = seq[k]
        if it.kind in ("valu", "lds") and fixed and fixed[-1].kind == "trans" and set(fixed[-1].wr) & set(it.rd):
            fixed.append(I("s_nop 0", "salu"))
        if it.kind == "mfma":
            need = 0
            for d, x in enumerate(reversed(fixed[-2:])):
                if x.kind in ("valu", "trans") and set(x.wr) & set(it.rd): need = max(need, 2 - d)
            if need: fixed.append(I(f"s_nop {need-1}", "salu"))
        if it.kind == "dma" and fixed and fixed[-1].text.startswith("s_add_u32 m0"): fixed.append(I("s_nop 0", "salu"))
        if it.kind in ("valu", "trans", "lds"):
            need = 0
            for d, x in enumerate(reversed(fixed[-8:])):
                if x.kind == "mfma" and set(x.wr) & set(it.rd + it.wr): need = max(need, 8 - d)
            if need: fixed.append(I(f"s_nop {need-1}", "salu"))
        fixed.append(it); k += 1
    return fixed[npre:]

def check_waits(seq):
    pend = []; bad = 0
    for it in seq:
        if it.kind in ("mfma", "valu", "trans") or (it.kind == "lds" and it.lds == "w"):
            for wr in pend:
                if wr & set(it.rd):
                    sys.stderr.write(f"WAIT missing before [{it.text}]\n"); bad += 1
        if it.kind == "lds": pend.append(set(it.wr))
        if it.kind == "wait":
            n = it.lds
            pend = pend[len(pend) - n:] if n else []
    return bad

def check_hazards(seq, name):
    bad = 0
    for i, it in enumerate(seq):
        for d in range(1, 14):
            j = i - d
            if j < 0: break
            pr = seq[j]; between = d - 1
            W = set(pr.wr); msg = None
            if pr.kind == "mfma" and it.kind in ("valu", "trans", "lds") and (W & set(it.rd + it.wr)) and between < 8: msg = "mfma16->valu"
            if pr.kind in ("valu", "trans") and it.kind == "mfma" and (W & set(it.rd)) and between < 2: msg = "valu->mfma"
            if pr.kind == "trans" and it.kind in ("valu", "lds") and (W & set(it.rd)) and between < 1: msg = "trans->valu"
            if pr.kind == "mfma" and it.kind == "mfma" and (W & set(it.rd)) and set(pr.wr) != set(it.wr): msg = "mfma->mfma operand"
            if pr.kind == "salu" and pr.text.startswith("s_add_u32 m0") and it.kind == "dma" and between < 1: msg = "m0->dma"
            if msg and not EXPERIMENT:
                sys.stderr.write(f"HAZARD {name}: {msg}: [{pr.text}] -> [{it.text}] dist {between}\n"); bad += 1
    return bad

def symbolic_check(seqs, first):
    ver = {}; xi = first - 1; errs = 0
    if EXPERIMENT: return 0
    for i, seq in seqs:
        for it in seq:
            for r, e in it.exp.items():
                if r in ver and ver[r] != e:
                    sys.stderr.write(f"SYM it{i}: [{it.text}] {r} has {ver[r]} expected {e}\n"); errs += 1
                elif r not in ver and i > first + 1:
                    sys.stderr.write(f"SYM it{i}: [{it.text}] {r} never written, expected {e}\n"); errs += 1
            if it.prod is not None:
                for r in it.wr: ver[r] = it.prod
            if it.kind == "bar": xi = i
            if it.mem:
                k, n = it.mem
                ok = {"rK": n == xi + 2, "rV": n == xi + 1, "wK": n == xi + 5, "wV": n == xi + 4, "wP": n == xi + 2, "rP": n == xi + 1}[k]
                if not ok:
                    sys.stderr.write(f"SYM it{i}: [{it.text}] mem {it.mem} after X({xi})\n"); errs += 1
            if errs > 20: return errs
    return errs

hdr = [f"; @launch grid=(256,1,1) block=(256,1,1) lds={LDS_BYTES}",
       '.amdgcn_target "amdgcn-amd-amdhsa--gfx950"', ".text", f".globl {NAME}", ".p2align 8",
       f".type {NAME},@function", f"{NAME}:"]
E("s_cmp_ge_u32 s2, 256")
E("s_cbranch_scc1 L_done")
E("s_load_dwordx4 s[4:7], s[0:1], 0")
E("s_load_dwordx4 s[8:11], s[0:1], 16")
if opt["stamps"]:
    E(f"s_load_dwordx2 s[{S_WS}:{S_WS+1}], s[0:1], 40")
    E("s_memrealtime s[60:61]")
    E("s_memtime s[64:65]")
E("s_and_b32 s14, s2, 7")
E("s_lshr_b32 s15, s2, 4")
E("s_lshl_b32 s15, s15, 3")
E("s_add_u32 s14, s14, s15")
E("s_lshr_b32 s15, s2, 3")
E("s_and_b32 s15, s15, 1")
t0, t1, t2, t3, t4, t5, t6, t7 = [T + i for i in range(8)]
LANE, K32, HH, Q16, GG = T + 8, T + 9, T + 10, T + 11, T + 12
E(f"v_lshrrev_b32 {vr(t0)}, 6, v0")
E(f"v_and_b32 {vr(LANE)}, 63, v0")
E(f"v_readfirstlane_b32 s{S_W}, {vr(t0)}")
E(f"v_and_b32 {vr(K32)}, 31, {vr(LANE)}")
E(f"v_lshrrev_b32 {vr(HH)}, 5, {vr(LANE)}")
E(f"v_and_b32 {vr(Q16)}, 15, {vr(LANE)}")
E(f"v_lshrrev_b32 {vr(GG)}, 4, {vr(LANE)}")
E(f"s_lshl_b32 s{S_WB}, s{S_W}, 12")
E(f"s_lshl_b32 s{S_T+1}, s{S_W}, 3")
E(f"v_add_u32 {vr(t0)}, s{S_T+1}, {vr(HH)}")
E(f"v_lshlrev_b32 {vr(t1)}, 9, {vr(t0)}")
for i in range(4):
    E(f"v_add_u32 {vr(t2)}, {2*i}, {vr(t0)}")
    E(f"v_and_b32 {vr(t2)}, 15, {vr(t2)}")
    E(f"v_xor_b32 {vr(t2)}, {vr(t2)}, {vr(K32)}")
    E(f"v_lshl_add_u32 {vr(VOK+i)}, {vr(t2)}, 4, {vr(t1)}")
E("s_waitcnt lgkmcnt(0)")
E(f"s_lshl_b32 s{S_T}, s14, 19")
for srd, src in ((SRD_K, 6), (SRD_V, 8)):
    E(f"s_add_u32 s{srd}, s{src}, s{S_T}")
    E(f"s_addc_u32 s{srd+1}, s{src+1}, 0")
    if srd == SRD_V:
        E(f"s_sub_u32 s{srd}, s{srd}, 16384")
        E(f"s_subb_u32 s{srd+1}, s{srd+1}, 0")
    E(f"s_and_b32 s{srd+1}, s{srd+1}, 0xffff")
    E(f"s_mov_b32 s{srd+2}, {524288 + (16384 if srd == SRD_V else 0)}")
    E(f"s_mov_b32 s{srd+3}, 0x20000")
E(f"s_mul_i32 s{S_T}, s14, 155648")
E(f"s_mul_i32 s{S_T+1}, s15, {160*512}")
E(f"s_add_u32 s{S_T}, s{S_T}, s{S_T+1}")
E(f"s_mul_i32 s{S_T+1}, s15, {16*512}")
E(f"s_sub_u32 s{S_T+1}, {160*512}, s{S_T+1}")
for srd, src in ((SRD_Q, 4), (SRD_O, 10)):
    E(f"s_add_u32 s{srd}, s{src}, s{S_T}")
    E(f"s_addc_u32 s{srd+1}, s{src+1}, 0")
    E(f"s_and_b32 s{srd+1}, s{srd+1}, 0xffff")
    E(f"s_mov_b32 s{srd+2}, s{S_T+1}")
    E(f"s_mov_b32 s{srd+3}, 0x20000")

def dma_tile(ldsaddr, srd, soff, voff4):
    E(f"s_add_u32 m0, s{S_WB}, {ldsaddr}")
    E("s_nop 0")
    for i in range(4):
        pol = opt['qp'] if srd == SRD_Q else opt['kvp']
        E(f"buffer_load_dwordx4 {vr(voff4+i)}, s[{srd}:{srd+3}], {soff} offen offset:{i*1024} {pol} lds")
def dma_K(slot): dma_tile(KBASE + slot*16384, SRD_K, f"s{S_KOFF}", VOK)
def dma_V(slot): dma_tile(VBASE + slot*16384, SRD_V, f"s{S_VOFF}", VOV)
QSTAGE = [KBASE + 2*16384, KBASE + 3*16384, VBASE + 2*16384, VBASE + 3*16384, Q5BASE]

E(f"s_mov_b32 s{S_KOFF}, 0")
dma_K(0)
for t in range(5):
    E(f"s_mov_b32 s{S_T+2}, {t*16384}")
    dma_tile(QSTAGE[t], SRD_Q, f"s{S_T+2}", VOK)
STAMP(0)
for i in range(4):
    E(f"v_add_u32 {vr(t2)}, {2*i}, {vr(HH)}")
    E(f"v_lshlrev_b32 {vr(t2)}, 1, {vr(t2)}")
    E(f"v_xor_b32 {vr(t2)}, {vr(t2)}, {vr(K32)}")
    E(f"v_lshl_add_u32 {vr(VOV+i)}, {vr(t2)}, 4, {vr(t1)}")
E(f"s_mov_b32 s{S_KOFF}, 16384")
dma_K(1)
E(f"s_mov_b32 s{S_VOFF}, 16384")
dma_V(0)
E(f"s_mov_b32 s{S_VOFF}, {2*16384}")
dma_V(1)
E(f"s_mov_b32 s{S_MODE}, 0")
E(f"s_mov_b32 s{S_C}, {CSCALE:#x}")
E(f"s_mov_b32 s{S_THR}, {THR:#x}")
E(f"v_lshlrev_b32 {vr(t1)}, 9, {vr(Q16)}")
for j in range(4):
    E(f"v_add_u32 {vr(t2)}, {4*j}, {vr(GG)}")
    E(f"v_xor_b32 {vr(t2)}, {vr(t2)}, {vr(Q16)}")
    E(f"v_lshl_add_u32 {vr(VAK+j)}, {vr(t2)}, 4, {vr(t1)}")
E(f"v_lshrrev_b32 {vr(t0)}, 2, {vr(LANE)}")
E(f"v_lshlrev_b32 {vr(t1)}, 9, {vr(t0)}")
E(f"v_and_b32 {vr(t2)}, 3, {vr(LANE)}")
E(f"v_lshl_add_u32 {vr(t1)}, {vr(t2)}, 3, {vr(t1)}")
E(f"v_add_u32 {vr(t1)}, {VBASE}, {vr(t1)}")
E(f"v_and_b32 {vr(t0)}, 7, {vr(t0)}")
E(f"v_xor_b32 {vr(t0)}, s{S_W}, {vr(t0)}")
for j in range(8):
    E(f"v_xor_b32 {vr(t2)}, {j}, {vr(t0)}")
    E(f"v_lshl_add_u32 {vr(VAV+j)}, {vr(t2)}, 5, {vr(t1)}")
E(f"v_lshlrev_b32 {vr(t0)}, 4, {vr(LANE)}")
E(f"v_add_u32 {vr(P5R)}, {P5BASE}, {vr(t0)}")
E(f"s_lshr_b32 s{S_T+1}, s{S_W}, 1")
E(f"s_lshl_b32 s{S_T+1}, s{S_T+1}, 10")
E(f"s_and_b32 s{S_T+2}, s{S_W}, 1")
E(f"s_lshl_b32 s{S_T+2}, s{S_T+2}, 3")
E(f"s_add_u32 s{S_T+1}, s{S_T+1}, s{S_T+2}")
E(f"v_add_u32 {vr(P5W)}, s{S_T+1}, {vr(P5R)}")
for r in range(160): E(f"v_mov_b32 {vr(r)}, 0")
for r in (L0, L0 + 1, L5): E(f"v_mov_b32 {vr(r)}, 0")
STAMP(1)
E("s_waitcnt vmcnt(12)")
STAMP(2)
E("s_barrier")
E(f"s_lshl_b32 s{S_T+1}, s{S_W}, 14")
E(f"s_and_b32 s{S_T+2}, s{S_W}, 2")
E(f"s_lshl_b32 s{S_T+2}, s{S_T+2}, 14")
E(f"s_add_u32 s{S_T+1}, s{S_T+1}, s{S_T+2}")
E(f"s_add_u32 s{S_T+1}, s{S_T+1}, {2*16384}")
for j in range(4): E(f"v_add_u32 {vr(t0+j)}, s{S_T+1}, {vr(VAK+j)}")
for qt in range(2):
    for s in range(8):
        E(f"ds_read_b128 {ar(Qfrag(qt,s),4)}, {vr(t0+(s&3))} offset:{qt*8192+(s>>2)*256}")
E(f"s_lshr_b32 s{S_T+1}, s{S_W}, 1")
E(f"s_lshl_b32 s{S_T+1}, s{S_T+1}, 13")
E(f"s_add_u32 s{S_T+1}, s{S_T+1}, {Q5BASE}")
for j in range(4): E(f"v_add_u32 {vr(t4+j)}, s{S_T+1}, {vr(VAK+j)}")
for s in range(8):
    E(f"ds_read_b128 {ar(A_Q5+4*s,4)}, {vr(t4+(s&3))} offset:{(s>>2)*256}")
E("s_waitcnt lgkmcnt(0)")
E("s_barrier")
STAMP(3)
E(f"s_mov_b32 s{S_KOFF}, {2*16384}")
dma_K(2)
E(f"s_mov_b32 s{S_KOFF}, {3*16384}")
dma_K(3)
E(f"s_mov_b32 s{S_VOFF}, {3*16384}")
dma_V(2)
E("s_branch L_first")

LBL("L_restart")
E(f"s_mov_b32 s{S_KOFF}, 0")
dma_K(0)
E(f"s_mov_b32 s{S_KOFF}, 16384")
dma_K(1)
E(f"s_mov_b32 s{S_VOFF}, 16384")
dma_V(0)
E(f"s_mov_b32 s{S_VOFF}, {2*16384}")
dma_V(1)
E(f"s_mov_b32 s{S_KOFF}, {2*16384}")
dma_K(2)
E(f"s_mov_b32 s{S_KOFF}, {3*16384}")
dma_K(3)
E(f"s_mov_b32 s{S_VOFF}, {3*16384}")
dma_V(2)
for r in range(160): E(f"v_mov_b32 {vr(r)}, 0")
for r in (L0, L0 + 1, L5): E(f"v_mov_b32 {vr(r)}, 0")
E("s_waitcnt vmcnt(24)")
E("s_barrier")
LBL("L_first")
S5B = PA
V0 = Var(0, True, True)
def qk_both(slotoff):
    for kb in range(2):
        for s in range(8):
            E(f"ds_read_b128 {ar(Kfrag(kb,s),4)}, {vr(VAK+(s&3))} offset:{slotoff+kb*8192+(s>>2)*256}")
    E("s_waitcnt lgkmcnt(0)")
    for kb in range(2):
        for s in range(8):
            for qt in range(2):
                S = Sblk(0, kb, qt); c = "0" if s == 0 else vr(S, 4)
                E(f"{MF} {vr(S,4)}, {ar(Kfrag(kb,s),4)}, {ar(Qfrag(qt,s),4)}, {c}")
            S = S5 if kb == 0 else S5B; c = "0" if s == 0 else vr(S, 4)
            E(f"{MF} {vr(S,4)}, {ar(Kfrag(kb,s),4)}, {ar(A_Q5+4*s,4)}, {c}")
    E("s_nop 7")
    E("s_nop 1")
qk_both(0)
STAMP(4)
def cross_op(dst, op, tmp):
    E(f"v_mov_b32 {vr(tmp)}, {vr(dst)}")
    E("s_nop 1")
    E(f"v_permlane32_swap_b32 {vr(dst)}, {vr(tmp)}")
    E("s_nop 1")
    E(f"{op} {vr(dst)}, {vr(dst)}, {vr(tmp)}")
    E(f"v_mov_b32 {vr(tmp)}, {vr(dst)}")
    E("s_nop 1")
    E(f"v_permlane16_swap_b32 {vr(dst)}, {vr(tmp)}")
    E("s_nop 1")
    E(f"{op} {vr(dst)}, {vr(dst)}, {vr(tmp)}")
def max8(dst, a, b, init):
    if init:
        E(f"v_max3_f32 {vr(dst)}, {vr(a)}, {vr(a+1)}, {vr(a+2)}")
        E(f"v_max3_f32 {vr(dst)}, {vr(dst)}, {vr(a+3)}, {vr(b)}")
        E(f"v_max3_f32 {vr(dst)}, {vr(dst)}, {vr(b+1)}, {vr(b+2)}")
        E(f"v_max_f32 {vr(dst)}, {vr(dst)}, {vr(b+3)}")
    else:
        for x in (a, a + 2, b, b + 2):
            E(f"v_max3_f32 {vr(dst)}, {vr(dst)}, {vr(x)}, {vr(x+1)}")
E(f"s_cmp_eq_u32 s{S_MODE}, 0")
E("s_cbranch_scc0 L_have_max")
for qt in range(2):
    max8(MC0 + qt, Sblk(0, 0, qt), Sblk(0, 1, qt), True)
max8(MC5, S5, S5B, True)
for r in (MC0, MC0 + 1, MC5):
    cross_op(r, "v_max_f32", t7)
    E(f"v_mul_f32 {vr(r)}, s{S_C}, {vr(r)}")
LBL("L_have_max")
E(f"s_and_b32 s{S_T}, s{S_W}, 1")
E(f"s_cmp_eq_u32 s{S_T}, 0")
E("s_cbranch_scc1 L_s5ok")
for r in range(4): E(f"v_mov_b32 {vr(S5+r)}, {vr(S5B+r)}")
LBL("L_s5ok")
_s5 = softmax5_stream(0, V0)
for r in range(4): E(_s5["F"][r].text)
for r in range(4): E(_s5["E"][r].text)
E("s_nop 0")
for r in range(4): E(_s5["A"][r].text)
for r in (1, 3): E(_s5["C"][r].text)
E(_s5["W"].text)
STAMP(5)
E("s_waitcnt vmcnt(16) lgkmcnt(0)")
STAMP(6)
E("s_barrier")

variants = [Var(0, True, True), Var(1, True, True)]
if opt["skip9"]:
    variants += [Var(0, True, False), Var(1, True, False), Var(0, False, False)]
E(f"s_and_b32 s{S_T}, s{S_W}, 1")
if opt["skip9"]:
    E(f"s_cmp_eq_u32 s15, 0")
    E("s_cbranch_scc1 L_disp_full")
    E(f"s_cmp_ge_u32 s{S_W}, 2")
    E(f"s_cbranch_scc1 L_var_{variants[4].name}")
    E(f"s_cmp_eq_u32 s{S_T}, 0")
    E(f"s_cbranch_scc1 L_var_{variants[2].name}")
    E(f"s_branch L_var_{variants[3].name}")
    LBL("L_disp_full")
E(f"s_cmp_eq_u32 s{S_T}, 1")
E(f"s_cbranch_scc1 L_var_{variants[1].name}")

totE = totH = totW = 0
for V in variants:
    def step_for(i):
        if i <= 27: return build_step(i, V, dma=(True, True))
        if i == 28: return build_step(i, V, dma=(True, False))
        if i == 29: return build_step(i, V, dma=(False, False), vm=8)
        if i == 30: return build_step(i, V, dma=(False, False), kr=False, vm=0)
        if i == 31: return build_step(i, V, qk=False, kr=False, dma=(False, False), sm_next=False, bar=False, p5r=False, vm=None, vr_next=False)
    allsteps = [step_for(i) for i in range(32)]
    pro = build_step(-1, V, dma=(True, True))
    xi = max(k for k, it in enumerate(pro) if it.kind == "bar")
    pro_tail = [it for it in pro[xi + 1:] if it.kind != "mfma"]
    totE += symbolic_check([(-1, [I("", "bar")] + pro_tail)] + [(i, s) for i, s in enumerate(allsteps)], -1)
    LBL(f"L_var_{V.name}")
    for it in pro_tail:
        E(it.text)
        if it.kind in ("trans", "salu"): E("s_nop 0")
    E(f"s_mov_b32 s{S_IT}, 0")
    if opt["stamps"]:
        E("s_memtime s[66:67]")
        E("s_memrealtime s[56:57]")
        E("s_waitcnt lgkmcnt(0)")
    out.append(".p2align 6")
    LBL(f"L_loop_{V.name}")
    for st in range(4):
        prev = pad_fix(build_step(st + 3, V, dma=(True, True))); seq = pad_fix(build_step(st + 4, V, dma=(True, True)), prev[-10:])
        totH += check_hazards(prev[-14:] + seq, f"{V.name}.step{st}")
        if not EXPERIMENT: totW += check_waits(prev + seq)
        for it in seq: E(it.text)
    E(f"s_add_u32 s{S_IT}, s{S_IT}, 1")
    E(f"s_cmp_lt_u32 s{S_IT}, 7")
    E(f"s_cbranch_scc1 L_loop_{V.name}")
    for i in range(28, 32):
        prev = allsteps[i - 1]; seq = allsteps[i]
        seq = pad_fix(seq, prev[-10:])
        totH += check_hazards(prev[-14:] + seq, f"{V.name}.tail{i}")
        if not EXPERIMENT: totW += check_waits(prev + seq)
        for it in seq: E(it.text)
    if V is not variants[-1]: E("s_branch L_epi")
    if opt["verbose"]:
        if V is variants[0]:
            pat = PAT_B + PAT_A; over = 0
            for p in range(80):
                c = sum(2 if k in ("E", "E5") else 1 for k, _ in SCHED[p]); over += max(0, c - 2)
                sys.stderr.write(f"p {p:2d} {pat[p]} {c} {'OVER' if c > 2 else '    '} " + " ".join(f"{k}{j}" for k, j in SCHED[p]) + "\n")
            sys.stderr.write(f"overflow {over}\n")
        sys.stderr.write(f"variant {V.name}: instrs/step {len(build_step(4, V, dma=(True, True)))}\n")
assert EXPERIMENT or (totE == 0 and totH == 0 and totW == 0), (totE, totH, totW)

LBL("L_epi")
if opt["stamps"]:
    E("s_memtime s[68:69]")
    E("s_memrealtime s[58:59]")
E("s_waitcnt vmcnt(0) lgkmcnt(0)")
E("s_nop 7")
for r in (L0, L0 + 1, L5): cross_op(r, "v_add_f32", t7)
E(f"v_mbcnt_lo_u32_b32 {vr(LANE)}, -1, 0")
E(f"v_mbcnt_hi_u32_b32 {vr(LANE)}, -1, {vr(LANE)}")
E(f"v_and_b32 {vr(Q16)}, 15, {vr(LANE)}")
E(f"v_lshrrev_b32 {vr(GG)}, 4, {vr(LANE)}")
E(f"s_lshr_b32 s{S_T}, s{S_W}, 1")
E(f"s_lshl_b32 s{S_T}, s{S_T}, 7")
E(f"s_and_b32 s{S_T+1}, s{S_W}, 1")
E(f"s_lshl_b32 s{S_T+1}, s{S_T+1}, 6")
E(f"s_add_u32 s{S_T}, s{S_T}, s{S_T+1}")
E(f"s_add_u32 s{S_T}, s{S_T}, {XBASE}")
E(f"v_lshlrev_b32 {vr(t0)}, 2, {vr(Q16)}")
E(f"v_add_u32 {vr(t1)}, s{S_T}, {vr(t0)}")
E(f"ds_write_b32 {vr(t1)}, {vr(L5)}")
E(f"v_max3_f32 {vr(t1)}, {vr(L0)}, {vr(L0+1)}, {vr(L5)}")
E(f"v_cmp_lt_f32 vcc, s{S_THR}, {vr(t1)}")
E("s_nop 4")
E("s_cmp_lg_u64 vcc, 0")
E(f"s_cselect_b32 s{S_T+2}, 1, 0")
E(f"v_mov_b32 {vr(t1)}, s{S_T+2}")
E(f"s_lshl_b32 s{S_T+3}, s{S_W}, 2")
E(f"s_add_u32 s{S_T+3}, s{S_T+3}, {XBASE+256}")
E(f"v_mov_b32 {vr(t2)}, s{S_T+3}")
E(f"ds_write_b32 {vr(t2)}, {vr(t1)}")
E("s_waitcnt lgkmcnt(0)")
E("s_barrier")
E(f"v_add_u32 {vr(t0)}, {XBASE}, {vr(t0)}")
E(f"ds_read_b32 {vr(t1)}, {vr(t0)}")
E(f"ds_read_b32 {vr(t2)}, {vr(t0)} offset:64")
E(f"ds_read_b32 {vr(t3)}, {vr(t0)} offset:128")
E(f"ds_read_b32 {vr(t4)}, {vr(t0)} offset:192")
E(f"v_mov_b32 {vr(t5)}, {XBASE+256}")
E(f"ds_read_b128 {vr(PA,4)}, {vr(t5)}")
E("s_waitcnt lgkmcnt(0)")
E(f"v_or_b32 {vr(PA)}, {vr(PA)}, {vr(PA+1)}")
E(f"v_or3_b32 {vr(PA)}, {vr(PA)}, {vr(PA+2)}, {vr(PA+3)}")
L8, L9 = MC0 + 0, MC0 + 1
E(f"v_add_f32 {vr(t1)}, {vr(t1)}, {vr(t2)}")
E(f"v_readfirstlane_b32 s{S_T}, {vr(PA)}")
E(f"v_add_f32 {vr(t3)}, {vr(t3)}, {vr(t4)}")
E("s_nop 3")
E(f"s_cmp_lg_u32 s{S_MODE}, 0")
E("s_cbranch_scc1 L_final")
E(f"s_cmp_lg_u32 s{S_T}, 0")
E("s_cbranch_scc1 L_maxpass")
LBL("L_final")
STAMP(7)
R8, R9 = t1, t3
E(f"v_rcp_f32 {vr(L0)}, {vr(L0)}")
E(f"v_rcp_f32 {vr(L0+1)}, {vr(L0+1)}")
E(f"v_rcp_f32 {vr(R8)}, {vr(R8)}")
E(f"v_rcp_f32 {vr(R9)}, {vr(R9)}")
EA = SA
E(f"v_and_b32 {vr(t4)}, 1, {vr(GG)}")
E(f"v_lshlrev_b32 {vr(t4)}, 1, {vr(t4)}")
E(f"v_lshrrev_b32 {vr(t5)}, 1, {vr(GG)}")
E(f"v_xor_b32 {vr(t6)}, {vr(t4)}, {vr(t5)}")
E(f"s_lshl_b32 s{S_T}, s{S_W}, 1")
E(f"v_xor_b32 {vr(t6)}, s{S_T}, {vr(t6)}")
E(f"v_xor_b32 {vr(t6)}, {vr(t6)}, {vr(Q16)}")
E(f"v_lshlrev_b32 {vr(t7)}, 9, {vr(Q16)}")
E(f"s_lshl_b32 s{S_T+1}, s{S_W}, 14")
E(f"v_add_u32 {vr(t0)}, s{S_T+1}, {vr(t7)}")
for j in range(4):
    E(f"v_xor_b32 {vr(t2)}, {4*j}, {vr(t6)}")
    E(f"v_lshl_add_u32 {vr(EA+j)}, {vr(t2)}, 4, {vr(t0)}")
E(f"v_lshlrev_b32 {vr(t4)}, 2, {vr(t4)}")
E(f"v_add_u32 {vr(t4)}, {vr(t4)}, {vr(t5)}")
E(f"v_add_u32 {vr(t4)}, s{S_T}, {vr(t4)}")
E(f"v_xor_b32 {vr(t4)}, {vr(t4)}, {vr(Q16)}")
E(f"v_lshl_add_u32 {vr(EA+4)}, {vr(t4)}, 4, {vr(t7)}")
E(f"v_add_u32 {vr(EA+4)}, {VBASE}, {vr(EA+4)}")
def stage_pair(a, b, rinv, addr, off):
    for r in range(4):
        E(f"v_mul_f32 {vr(a+r)}, {vr(a+r)}, {vr(rinv)}")
        E(f"v_mul_f32 {vr(b+r)}, {vr(b+r)}, {vr(rinv)}")
    E(f"v_cvt_pk_bf16_f32 {vr(a)}, {vr(a)}, {vr(a+1)}")
    E(f"v_cvt_pk_bf16_f32 {vr(a+1)}, {vr(a+2)}, {vr(a+3)}")
    E(f"v_cvt_pk_bf16_f32 {vr(a+2)}, {vr(b)}, {vr(b+1)}")
    E(f"v_cvt_pk_bf16_f32 {vr(a+3)}, {vr(b+2)}, {vr(b+3)}")
    E("s_nop 1")
    E(f"v_permlane16_swap_b32 {vr(a)}, {vr(a+2)}")
    E(f"v_permlane16_swap_b32 {vr(a+1)}, {vr(a+3)}")
    E(f"ds_write_b128 {vr(addr)}, {vr(a,4)} offset:{off}")
for qt in range(2):
    for i in range(0, 16, 2):
        stage_pair(O_OWN + 8*i + 4*qt, O_OWN + 8*(i+1) + 4*qt, L0 + qt, EA + ((i >> 1) & 3), qt*8192 + (i >> 3)*256)
for q5 in range(2):
    for k in (0, 2):
        stage_pair(O5 + 8*k + 4*q5, O5 + 8*(k+1) + 4*q5, (R8, R9)[q5], EA + 4, q5*8192 + (k >> 1)*256)
E("s_waitcnt lgkmcnt(0)")
E("s_barrier")
STAMP(8)
E(f"v_lshlrev_b32 {vr(t0)}, 4, {vr(LANE)}")
E(f"v_add_u32 {vr(t0)}, s{S_WB}, {vr(t0)}")
E(f"v_add_u32 {vr(t1)}, {VBASE}, {vr(t0)}")
for t in range(5):
    for i in range(4):
        a = t0 if t < 4 else t1
        off = (t*16384 if t < 4 else 0) + i*1024
        E(f"ds_read_b128 {vr(16*t+4*i,4)}, {vr(a)} offset:{off}")
for t in range(5):
    E(f"s_mov_b32 s{S_T}, {t*16384}")
    for i in range(4):
        E(f"s_waitcnt lgkmcnt({min(15, 19-(4*t+i))})")
        E(f"buffer_store_dwordx4 {vr(16*t+4*i,4)}, {vr(VOK+i)}, s[{SRD_O}:{SRD_O+3}], s{S_T} offen offset:{i*1024} {opt['op']}")
if opt["stamps"]:
    E("s_waitcnt vmcnt(0)")
    E("s_memrealtime s[62:63]")
    E("s_memtime s[70:71]")
    E("s_waitcnt lgkmcnt(0)")
    E(f"s_mov_b32 s72, s{S_WS}")
    E(f"s_and_b32 s73, s{S_WS+1}, 0xffff")
    E("s_mov_b32 s74, 262144")
    E("s_mov_b32 s75, 0x20000")
    E("s_sub_u32 s66, s66, s64")
    E("s_sub_u32 s68, s68, s64")
    E("s_sub_u32 s70, s70, s64")
    for k, sreg in enumerate((60, 61, 62, 63)): E(f"v_mov_b32 v{k}, s{sreg}")
    E("v_mov_b32 v4, s66"); E("v_mov_b32 v5, s68"); E("v_mov_b32 v6, s70"); E("s_sub_u32 s58, s58, s56"); E("v_mov_b32 v7, s58")
    E("s_lshl_b32 s76, s2, 6")
    E(f"s_lshl_b32 s77, s{S_W}, 4")
    E("s_add_u32 s76, s76, s77")
    E("v_mov_b32 v8, s76")
    E(f"v_cmp_eq_u32 vcc, 0, {vr(LANE)}")
    E("s_and_saveexec_b64 s[78:79], vcc")
    E("buffer_store_dwordx4 v[0:3], v8, s[72:75], 0 offen")
    E("v_add_u32 v8, 0x8000, v8")
    E("buffer_store_dwordx4 v[4:7], v8, s[72:75], 0 offen")
    for q in range(3):
        for k in range(4):
            kk = q*4+k
            if kk < 9:
                E(f"s_sub_u32 s{80+2*kk}, s{80+2*kk}, s64")
                E(f"v_mov_b32 v{12+k}, s{80+2*kk}")
        E(f"v_add_u32 v8, 0x4000, v8")
        E("s_nop 1")
        E("buffer_store_dwordx4 v[12:15], v8, s[72:75], 0 offen")
E("s_endpgm")

LBL("L_maxpass")
E(f"s_mov_b32 s{S_MODE}, 1")
for r in (MC0, MC0 + 1, MC5): E(f"v_mov_b32 {vr(r)}, 0xff800000")
E(f"s_mov_b32 s{S_KOFF}, 0")
LBL("L_maxloop")
E("s_barrier")
dma_K(0)
E("s_waitcnt vmcnt(0)")
E("s_barrier")
qk_both(0)
for qt in range(2): max8(MC0 + qt, Sblk(0, 0, qt), Sblk(0, 1, qt), False)
max8(MC5, S5, S5B, False)
E(f"s_add_u32 s{S_KOFF}, s{S_KOFF}, 16384")
E(f"s_cmp_lt_u32 s{S_KOFF}, 524288")
E("s_cbranch_scc1 L_maxloop")
for r in (MC0, MC0 + 1, MC5):
    cross_op(r, "v_max_f32", t7)
    E(f"v_mul_f32 {vr(r)}, s{S_C}, {vr(r)}")
E("s_barrier")
E("s_branch L_restart")
LBL("L_done")
E("s_endpgm")

tail = ['.section .rodata,"a"', ".p2align 6", f".amdhsa_kernel {NAME}",
        "  .amdhsa_next_free_vgpr 512", "  .amdhsa_next_free_sgpr 102", "  .amdhsa_accum_offset 256",
        "  .amdhsa_group_segment_fixed_size 0", "  .amdhsa_kernarg_size 48", "  .amdhsa_user_sgpr_count 2",
        "  .amdhsa_user_sgpr_kernarg_segment_ptr 1", "  .amdhsa_system_sgpr_workgroup_id_x 1", ".end_amdhsa_kernel"]
print("\n".join(hdr + out + tail))
```

```python
import sys, struct

opt = dict(kvp="nt", qp="nt", op="nt", stamps=0, verbose=0,
           vr0=0, vr1=33, s5a=27, s5b=37, kr0=40, kr1=72, dma0=41, dma1=78, sm0=41, sm1=37,
           nodma=0, nolds=0, novalu=0, nobar=0, nomfma=0, skip9=0, patb1="", pata1="", l2hit=0, idle=0, pkmul=1, dalone=0, dlast=0,
           patb="KEKKKEKDKEKKVKEKDKEKVKKEKDKEKVKVEVDVEVVV",
           pata="VEVVDVEVVVEVVeVeVDeVeVVWEVVVEVVVVVVEDEDX")
for a in sys.argv[1:]:
    k, v = a.split("=", 1)
    opt[k] = type(opt[k])(v)
EXPERIMENT = opt["l2hit"] or opt["nodma"] or opt["nolds"] or opt["novalu"] or opt["nobar"] or opt["nomfma"]

def f2u(x): return struct.unpack("<I", struct.pack("<f", x))[0]
CSCALE = f2u(1.4426950408889634 / 16.0)
THR = f2u(2.0 ** 30)
NAME = "standalone__mha_softmax__near_ridge_kernel"

O_OWN = 0; O5 = 128; SA = 160; SB = 176; S5 = 192; PA = 196; PB = 204; P5OUT = 212
L0 = 214; L5 = 216; MC0 = 217; MC5 = 219
VAK = 220; VAV = 224; VOK = 232; VOV = 236; P5W = 240; P5R = 241
T = 242
A_V = 0; A_K = 64; A_Q = 128; A_Q5 = 192; A_P5F = 224
KBASE = 0; VBASE = 65536; P5BASE = 131072; XBASE = 135168; Q5BASE = 136192; LDS_BYTES = 152576
S_W = 16
SRD_K = 20; SRD_V = 24; SRD_Q = 28; SRD_O = 32
S_KOFF = 36; S_VOFF = 37; S_WB = 38; S_C = 39; S_IT = 40; S_MODE = 41; S_THR = 42; S_HALF = 15
S_T = 48
S_WS = 12

out = []
def E(s): out.append("  " + s)
def LBL(s): out.append(s + ":")
def STAMP(k):
    if opt["stamps"]: out.append(f"  s_memtime s[{80+2*k}:{81+2*k}]")
def vr(b, n=1): return f"v{b}" if n == 1 else f"v[{b}:{b+n-1}]"
def ar(b, n=1): return f"a{b}" if n == 1 else f"a[{b}:{b+n-1}]"
def R(pref, b, n): return [f"{pref}{b+i}" for i in range(n)]

class I:
    def __init__(s, text, kind, rd=(), wr=(), lds=None, prod=None, exp=None, mem=None):
        s.text, s.kind, s.rd, s.wr, s.lds = text, kind, list(rd), list(wr), lds
        s.prod = prod; s.exp = exp or {}; s.mem = mem
        s.slots = 2 if kind == "trans" else 1

def Sreg(n): return SA if n % 2 == 0 else SB
def Preg(n): return PA if n % 2 == 0 else PB
def P5Freg(n): return A_P5F + 8 * (n % 2)
def Sblk(n, kb, qt): return Sreg(n) + 8 * kb + 4 * qt
def Kfrag(kb, s): return A_K + 4 * (8 * kb + s)
def Qfrag(qt, s): return A_Q + 32 * qt + 4 * s
I_ORDER = [1, 2, 3, 5, 6, 7, 9, 10, 11, 13, 14, 15, 0, 4, 8, 12]
MF = "v_mfma_f32_16x16x32_bf16"

class Var:
    def __init__(s, kh, q5, pv9, par=None):
        s.kh, s.q5, s.pv9 = kh, q5, pv9; s.par = kh if par is None else par; s.name = f"k{kh}q{int(q5)}p{int(pv9)}"

def qk_mfmas(n, V, full=False):
    seq = []
    for s_ in range(8):
        f = Kfrag(V.kh, s_)
        c = "0" if s_ == 0 else vr(S5, 4)
        e = {r: ("K", n, V.kh, s_) for r in R("a", f, 4)}
        it = I(f"{MF} {vr(S5,4)}, {ar(f,4)}, {ar(A_Q5+4*s_,4)}, {c}", "mfma",
               rd=R("a", f, 4) + R("a", A_Q5+4*s_, 4) + (R("v", S5, 4) if s_ else []), wr=R("v", S5, 4), prod=("S5", n, s_), exp=e)
        seq.append(it if V.q5 else None)
    for kb in range(2):
        for s_ in range(8):
            f = Kfrag(kb, s_)
            for qt in range(2):
                S = Sblk(n, kb, qt)
                c = "0" if s_ == 0 else vr(S, 4)
                e = {r: ("K", n, kb, s_) for r in R("a", f, 4)}
                seq.append(I(f"{MF} {vr(S,4)}, {ar(f,4)}, {ar(Qfrag(qt,s_),4)}, {c}", "mfma",
                             rd=R("a", f, 4) + R("a", Qfrag(qt, s_), 4) + (R("v", S, 4) if s_ else []), wr=R("v", S, 4), prod=("S", n, kb, qt, s_), exp=e))
    return seq

def pv_mfmas(n, V):
    seq = []
    for i in I_ORDER:
        f = A_V + 4 * i
        for qt in range(2):
            o = O_OWN + 8 * i + 4 * qt; p = Preg(n) + 4 * qt
            e = {r: ("V", n, i) for r in R("a", f, 4)}
            e.update({f"v{p+k}": ("P", n, qt, k) for k in range(4)})
            seq.append(I(f"{MF} {vr(o,4)}, {ar(f,4)}, {vr(p,4)}, {vr(o,4)}", "mfma", rd=R("a", f, 4) + R("v", p, 4) + R("v", o, 4), wr=R("v", o, 4), exp=e))
        if i % 4 == 0:
            for q5 in range(2):
                o = O5 + 8 * (i // 4) + 4 * q5; p = P5Freg(n) + 4 * q5
                e = {r: ("V", n, i) for r in R("a", f, 4)}
                e.update({r: ("P5F", n, q5) for r in R("a", p, 4)})
                it = I(f"{MF} {vr(o,4)}, {ar(f,4)}, {ar(p,4)}, {vr(o,4)}", "mfma", rd=R("a", f, 4) + R("a", p, 4) + R("v", o, 4), wr=R("v", o, 4), exp=e)
                seq.append(it if (q5 == 0 or V.pv9) else None)
    return seq

def softmax_items(regs, mc, l, last, tg, n):
    pass

def softmax_stream(n, V):
    units = []
    for qt in range(2):
        for kb in range(2):
            for r in range(4):
                units.append((kb, qt, r))
    P = Preg(n)
    fma, ex, ad, cv = [], [], [], {}
    for u, (kb, qt, r) in enumerate(units):
        x = Sblk(n, kb, qt) + r
        fma.append(I(f"v_fma_f32 {vr(x)}, {vr(x)}, s{S_C}, -{vr(MC0+qt)}", "valu", rd=[f"v{x}", f"v{MC0+qt}"], wr=[f"v{x}"], prod=("X", n, u), exp={f"v{x}": ("S", n, kb, qt, 7)}))
        ex.append(I(f"v_exp_f32 {vr(x)}, {vr(x)}", "trans", rd=[f"v{x}"], wr=[f"v{x}"], prod=("E", n, u), exp={f"v{x}": ("X", n, u)}))
        ad.append(I(f"v_add_f32 {vr(L0+qt)}, {vr(L0+qt)}, {vr(x)}", "valu", rd=[f"v{x}", f"v{L0+qt}"], wr=[f"v{L0+qt}"], exp={f"v{x}": ("E", n, u)}))
        if r % 2 == 1:
            d = P + 4 * qt + 2 * kb + r // 2
            cv[u] = I(f"v_cvt_pk_bf16_f32 {vr(d)}, {vr(x-1)}, {vr(x)}", "valu", rd=[f"v{x-1}", f"v{x}"], wr=[f"v{d}"], prod=("P", n, qt, 2*kb + r//2),
                      exp={f"v{x-1}": ("E", n, u-1), f"v{x}": ("E", n, u)})
    return dict(F=fma, E=ex, A=ad, C=cv)

def interleave(fma, ex, ad, cv):
    n = len(fma); seq = []
    for r in range(n + 2):
        if r < n: seq.append(fma[r])
        if 0 <= r - 1 < n: seq.append(ex[r-1])
        if 0 <= r - 2 < n:
            seq.append(ad[r-2])
            if (r - 2) in cv: seq.append(cv[r-2])
    return seq

def softmax5_stream(n, V):
    fma, ex, ad, cv = [], [], [], {}
    for r in range(4):
        x = S5 + r
        fma.append(I(f"v_fma_f32 {vr(x)}, {vr(x)}, s{S_C}, -{vr(MC5)}", "valu", rd=[f"v{x}", f"v{MC5}"], wr=[f"v{x}"], prod=("X5", n, r), exp={f"v{x}": ("S5", n, 7)}))
        ex.append(I(f"v_exp_f32 {vr(x)}, {vr(x)}", "trans", rd=[f"v{x}"], wr=[f"v{x}"], prod=("E5", n, r), exp={f"v{x}": ("X5", n, r)}))
        ad.append(I(f"v_add_f32 {vr(L5)}, {vr(L5)}, {vr(x)}", "valu", rd=[f"v{x}", f"v{L5}"], wr=[f"v{L5}"], exp={f"v{x}": ("E5", n, r)}))
        if r % 2 == 1:
            cv[r] = I(f"v_cvt_pk_bf16_f32 {vr(P5OUT+r//2)}, {vr(x-1)}, {vr(x)}", "valu", rd=[f"v{x-1}", f"v{x}"], wr=[f"v{P5OUT+r//2}"], prod=("P5", n, r//2),
                      exp={f"v{x-1}": ("E5", n, r-1), f"v{x}": ("E5", n, r)})
    W = I(f"ds_write_b64 {vr(P5W)}, {vr(P5OUT,2)} offset:{(n%2)*2048}", "lds", rd=R("v", P5OUT, 2), lds="w",
          exp={f"v{P5OUT+k}": ("P5", n, k) for k in range(2)}, mem=("wP", n))
    return dict(F=fma, E=ex, A=ad, C=cv, W=W)

def k_reads(n, V):
    slot = n % 4; seq = []
    for kb in (V.kh, 1 - V.kh):
        for s in range(8):
            f = Kfrag(kb, s)
            seq.append(I(f"ds_read_b128 {ar(f,4)}, {vr(VAK+(s&3))} offset:{slot*16384+kb*8192+(s>>2)*256}", "lds", wr=R("a", f, 4), lds="r", prod=("K", n, kb, s), mem=("rK", n)))
    return seq

def v_reads(n):
    slot = n % 4; seq = []
    for i in I_ORDER:
        f = A_V + 4 * i
        for jj in range(2):
            off = slot*16384 + jj*8192 + (i >> 3)*256
            seq.append(I(f"ds_read_b64_tr_b16 {ar(f+2*jj,2)}, {vr(VAV+(i&7))} offset:{off}", "lds", wr=R("a", f+2*jj, 2), lds="r", prod=("V", n, i), mem=("rV", n)))
    return seq

def p5_reads(n, V):
    return [(I(f"ds_read_b128 {ar(P5Freg(n)+4*q,4)}, {vr(P5R)} offset:{(n%2)*2048+q*1024}", "lds", wr=R("a", P5Freg(n)+4*q, 4), lds="r", prod=("P5F", n, q), mem=("rP", n))
             if (q == 0 or V.pv9) else None) for q in range(2)]

def dma_group(j):
    ks, vs = (j + 5) % 4, (j + 4) % 4
    d = {"MK": I(f"s_add_u32 m0, s{S_WB}, {KBASE+ks*16384}", "salu"), "KO": I(f"s_add_u32 s{S_KOFF}, s{S_KOFF}, {0 if opt['l2hit'] else 16384}", "salu"),
         "MV": I(f"s_add_u32 m0, s{S_WB}, {VBASE+vs*16384}", "salu"), "D": []}
    for i in range(4):
        d["D"].append(I(f"buffer_load_dwordx4 {vr(VOK+i)}, s[{SRD_K}:{SRD_K+3}], s{S_KOFF} offen offset:{i*1024} {opt['kvp']} lds", "dma", mem=("wK", j+5)))
    for i in range(4):
        d["D"].append(I(f"buffer_load_dwordx4 {vr(VOV+i)}, s[{SRD_V}:{SRD_V+3}], s{S_KOFF} offen offset:{i*1024} {opt['kvp']} lds", "dma", mem=("wV", j+4)))
    return d

PAT_B = opt["patb"]
PAT_A = opt["pata"]
assert len(PAT_B) == 40 and len(PAT_A) == 40
def make_schedule(PAT_B, PAT_A):
    pat = PAT_B + PAT_A
    gaps = [[] for _ in range(80)]
    cnt = {}
    posE = {}; posE5 = {}; posD = {}
    for p, t in enumerate(pat):
        if t == "X" or t == "-": continue
        n = cnt.get(t, 0); cnt[t] = n + 1
        key = {"K": "K", "V": "V", "E": "E", "D": "D", "e": "E5", "W": "W"}[t]
        gaps[p].append((key, n))
        if t == "E": posE[n] = p
        if t == "e": posE5[n] = p
        if t == "D": posD[n] = p
    assert cnt == {"K": 18, "V": 32, "E": 16, "D": 8, "e": 4, "W": 1}, cnt
    posW = pat.index("W")
    items = []
    for u in range(16):
        items.append((("F", u), 0 if (u % 8) < 4 else 4, posE[u] - 1))
        items.append((("A", u), posE[u] + 1, 79))
        if u % 2 == 1: items.append((("C", u), posE[u] + 1, 78))
    for r in range(4):
        items.append((("F5", r), 51, posE5[r] - 1))
        items.append((("A5", r), posE5[r] + 1, 79))
        if r % 2 == 1: items.append((("C5", r), posE5[r] + 1, posW - 1))
    if posD[0] < 3:
        items.append((("MK", 1), 60, 78))
        items.append((("KO", 1), 60, 78))
    else:
        items.append((("MK", 0), 0, posD[0] - 1))
        items.append((("KO", 0), 0, posD[0] - 1))
    items.append((("MV", 0), posD[3] + 1, posD[4] - 1))
    done = set()
    for p in range(80):
        free = 2 - sum(2 if k in ("E", "E5") else 1 for k, _ in gaps[p])
        if pat[p] == "X": free = 0
        if pat[p] == "D" and opt["dalone"]: free = 0
        if p == 39: free -= 1
        while True:
            cand = [(dl, key) for key, e, dl in items if key not in done and e <= p]
            cand = [c for c in cand if not (c[1][0] in ("A", "A5") and c[1][1] > 0 and (c[1][0], c[1][1] - 1) not in done and False)]
            cand.sort()
            if not cand: break
            dl, key = cand[0]
            if free <= 0 and dl > p: break
            gaps[p].append(key); done.add(key); free -= 1
    assert len(done) == len(items)
    return gaps
SCHED = make_schedule(PAT_B, PAT_A)
SCHEDS = {0: SCHED, 1: make_schedule(opt['patb1'] or PAT_B, opt['pata1'] or PAT_A)}

def build_step(i, V, qk=True, kr=True, dma=True, sm_next=True, vm=16, bar=True, p5r=True, vr_next=True):
    mA = qk_mfmas(i + 1, V); mB = pv_mfmas(i, V)
    def resolve(key, n):
        k, j = key
        if k == "K":
            it = (k_reads(n + 1, V) + p5_reads(n, V))[KORD[j]]
            if it is None: return None
            if KORD[j] < 16 and not kr: return None
            if KORD[j] >= 16 and not p5r: return None
            return it
        if k == "V": return v_reads(n)[j]
        if k in ("E", "F", "A", "C"): return softmax_stream(n, V)[k][j]
        if k in ("E5", "F5", "A5", "C5"): return softmax5_stream(n + 1, V)[k[0]][j] if (V.q5 and qk) else None
        if k == "W": return softmax5_stream(n + 1, V)["W"] if (V.q5 and qk) else None
        if k == "D": return None if opt["nodma"] else dma_group(n - 1)["D"][j]
        if k in ("MK", "KO", "MV"): return dma_group(n - 1 + j)[k]
    groups = []
    for ph, (ms, p0, n) in enumerate(((mA, 40, i), (mB, 0, i + 1))):
        for g in range(40):
            p = p0 + g; fl = []
            for key in SCHEDS[V.par][p]:
                k = key[0]
                if k in ("D", "MK", "KO", "MV") and not (dma[1] if (k in ("MK", "KO") and key[1] == 1) else dma_cur_flag(i, ph, dma)): continue
                if ph == 1 and k in ("E", "F", "A", "C") and not sm_next: continue
                if ph == 1 and k == "V" and not vr_next: continue
                if opt["nolds"] and k in ("K", "V"): continue
                if opt["novalu"] and k in ("E", "F", "A", "C", "E5", "F5", "A5", "C5", "W"): continue
                it = resolve(key, n)
                if it is not None: fl.append(it)
            m = ms[g] if (qk or ph == 1) else None
            if m is None and groups and not (ph == 1 and g == 0): groups[-1][1].extend(fl)
            else: groups.append([m, fl])
            if p == 79:
                w = "s_waitcnt lgkmcnt(0)" if (vm is None or opt["nodma"]) else f"s_waitcnt vmcnt({vm}) lgkmcnt(0)"
                groups.append([None, [I(w, "wait", lds=0), I("s_barrier" if (bar and not opt["nobar"]) else "s_nop 0", "bar")]])
            if p == 39:
                groups.append([None, [I("WAITK", "wait", lds="K")]])
    seq = []
    for m, fl in groups:
        if m is not None: seq.append(m)
        fl = sorted(fl, key=lambda x: (2.5 if (x.kind == "dma" and opt["dlast"]) else 0) if x.kind in ("lds", "dma") else (1 if x.kind in ("salu",) else (3 if x.kind in ("wait", "bar") else 2)))
        seq += fl
    k = max(j for j, x in enumerate(seq) if x.text == "WAITK")
    n_after = 0
    for x in reversed(seq[:k]):
        if x.kind == "lds":
            if x.mem and x.mem[0] == "rV": n_after += 1
            else: break
        if x.kind == "wait": break
    seq[k] = I(f"s_waitcnt lgkmcnt({min(n_after, 15)})", "wait", lds=min(n_after, 15))
    if opt["nomfma"]: seq = [x for x in seq if x.kind != "mfma"]
    return seq
def dma_cur_flag(i, ph, dma):
    return dma[ph]
KORD = list(range(8)) + [16] + list(range(8, 12)) + [17] + list(range(12, 16))

def pad_fix(seq, prefix=()):
    fixed = list(prefix); npre = len(fixed)
    k = 0; seq = list(seq)
    while k < len(seq):
        it = seq[k]
        if it.kind in ("valu", "lds") and fixed and fixed[-1].kind == "trans" and set(fixed[-1].wr) & set(it.rd):
            fixed.append(I("s_nop 0", "salu"))
        if it.kind == "mfma":
            need = 0
            for d, x in enumerate(reversed(fixed[-2:])):
                if x.kind in ("valu", "trans") and set(x.wr) & set(it.rd): need = max(need, 2 - d)
            if need: fixed.append(I(f"s_nop {need-1}", "salu"))
        if it.kind == "dma" and fixed and fixed[-1].text.startswith("s_add_u32 m0"): fixed.append(I("s_nop 0", "salu"))
        if it.kind in ("valu", "trans", "lds"):
            need = 0
            for d, x in enumerate(reversed(fixed[-8:])):
                if x.kind == "mfma" and set(x.wr) & set(it.rd + it.wr): need = max(need, 8 - d)
            if need: fixed.append(I(f"s_nop {need-1}", "salu"))
        fixed.append(it); k += 1
    return fixed[npre:]

def check_waits(seq):
    pend = []; bad = 0
    for it in seq:
        if it.kind in ("mfma", "valu", "trans") or (it.kind == "lds" and it.lds == "w"):
            for wr in pend:
                if wr & set(it.rd):
                    sys.stderr.write(f"WAIT missing before [{it.text}]\n"); bad += 1
        if it.kind == "lds": pend.append(set(it.wr))
        if it.kind == "wait":
            n = it.lds
            pend = pend[len(pend) - n:] if n else []
    return bad

def check_hazards(seq, name):
    bad = 0
    for i, it in enumerate(seq):
        for d in range(1, 14):
            j = i - d
            if j < 0: break
            pr = seq[j]; between = d - 1
            W = set(pr.wr); msg = None
            if pr.kind == "mfma" and it.kind in ("valu", "trans", "lds") and (W & set(it.rd + it.wr)) and between < 8: msg = "mfma16->valu"
            if pr.kind in ("valu", "trans") and it.kind == "mfma" and (W & set(it.rd)) and between < 2: msg = "valu->mfma"
            if pr.kind == "trans" and it.kind in ("valu", "lds") and (W & set(it.rd)) and between < 1: msg = "trans->valu"
            if pr.kind == "mfma" and it.kind == "mfma" and (W & set(it.rd)) and set(pr.wr) != set(it.wr): msg = "mfma->mfma operand"
            if pr.kind == "salu" and pr.text.startswith("s_add_u32 m0") and it.kind == "dma" and between < 1: msg = "m0->dma"
            if msg and not EXPERIMENT:
                sys.stderr.write(f"HAZARD {name}: {msg}: [{pr.text}] -> [{it.text}] dist {between}\n"); bad += 1
    return bad

def symbolic_check(seqs, first):
    ver = {}; xi = first - 1; errs = 0
    if EXPERIMENT: return 0
    for i, seq in seqs:
        for it in seq:
            for r, e in it.exp.items():
                if r in ver and ver[r] != e:
                    sys.stderr.write(f"SYM it{i}: [{it.text}] {r} has {ver[r]} expected {e}\n"); errs += 1
                elif r not in ver and i > first + 1:
                    sys.stderr.write(f"SYM it{i}: [{it.text}] {r} never written, expected {e}\n"); errs += 1
            if it.prod is not None:
                for r in it.wr: ver[r] = it.prod
            if it.kind == "bar": xi = i
            if it.mem:
                k, n = it.mem
                ok = {"rK": n == xi + 2, "rV": n == xi + 1, "wK": n == xi + 5, "wV": n == xi + 4, "wP": n == xi + 2, "rP": n == xi + 1}[k]
                if not ok:
                    sys.stderr.write(f"SYM it{i}: [{it.text}] mem {it.mem} after X({xi})\n"); errs += 1
            if errs > 20: return errs
    return errs

hdr = [f"; @launch grid=(256,1,1) block=(256,1,1) lds={LDS_BYTES}",
       '.amdgcn_target "amdgcn-amd-amdhsa--gfx950"', ".text", f".globl {NAME}", ".p2align 8",
       f".type {NAME},@function", f"{NAME}:"]
E("s_cmp_ge_u32 s2, 256")
E("s_cbranch_scc1 L_done")
E("s_load_dwordx4 s[4:7], s[0:1], 0")
E("s_load_dwordx4 s[8:11], s[0:1], 16")
if opt["stamps"]:
    E(f"s_load_dwordx2 s[{S_WS}:{S_WS+1}], s[0:1], 40")
    E("s_memrealtime s[60:61]")
    E("s_memtime s[64:65]")
E("s_and_b32 s14, s2, 7")
E("s_lshr_b32 s15, s2, 4")
E("s_lshl_b32 s15, s15, 3")
E("s_add_u32 s14, s14, s15")
E("s_lshr_b32 s15, s2, 3")
E("s_and_b32 s15, s15, 1")
t0, t1, t2, t3, t4, t5, t6, t7 = [T + i for i in range(8)]
LANE, K32, HH, Q16, GG = T + 8, T + 9, T + 10, T + 11, T + 12
E(f"v_lshrrev_b32 {vr(t0)}, 6, v0")
E(f"v_and_b32 {vr(LANE)}, 63, v0")
E(f"v_readfirstlane_b32 s{S_W}, {vr(t0)}")
E(f"v_and_b32 {vr(K32)}, 31, {vr(LANE)}")
E(f"v_lshrrev_b32 {vr(HH)}, 5, {vr(LANE)}")
E(f"v_and_b32 {vr(Q16)}, 15, {vr(LANE)}")
E(f"v_lshrrev_b32 {vr(GG)}, 4, {vr(LANE)}")
E(f"s_lshl_b32 s{S_WB}, s{S_W}, 12")
E(f"s_lshl_b32 s{S_T+1}, s{S_W}, 3")
E(f"v_add_u32 {vr(t0)}, s{S_T+1}, {vr(HH)}")
E(f"v_lshlrev_b32 {vr(t1)}, 9, {vr(t0)}")
for i in range(4):
    E(f"v_add_u32 {vr(t2)}, {2*i}, {vr(t0)}")
    E(f"v_and_b32 {vr(t2)}, 15, {vr(t2)}")
    E(f"v_xor_b32 {vr(t2)}, {vr(t2)}, {vr(K32)}")
    E(f"v_lshl_add_u32 {vr(VOK+i)}, {vr(t2)}, 4, {vr(t1)}")
E("s_waitcnt lgkmcnt(0)")
E(f"s_lshl_b32 s{S_T}, s14, 19")
for srd, src in ((SRD_K, 6), (SRD_V, 8)):
    E(f"s_add_u32 s{srd}, s{src}, s{S_T}")
    E(f"s_addc_u32 s{srd+1}, s{src+1}, 0")
    if srd == SRD_V:
        E(f"s_sub_u32 s{srd}, s{srd}, 16384")
        E(f"s_subb_u32 s{srd+1}, s{srd+1}, 0")
    E(f"s_and_b32 s{srd+1}, s{srd+1}, 0xffff")
    E(f"s_mov_b32 s{srd+2}, {524288 + (16384 if srd == SRD_V else 0)}")
    E(f"s_mov_b32 s{srd+3}, 0x20000")
E(f"s_mul_i32 s{S_T}, s14, 155648")
E(f"s_mul_i32 s{S_T+1}, s15, {160*512}")
E(f"s_add_u32 s{S_T}, s{S_T}, s{S_T+1}")
E(f"s_mul_i32 s{S_T+1}, s15, {16*512}")
E(f"s_sub_u32 s{S_T+1}, {160*512}, s{S_T+1}")
for srd, src in ((SRD_Q, 4), (SRD_O, 10)):
    E(f"s_add_u32 s{srd}, s{src}, s{S_T}")
    E(f"s_addc_u32 s{srd+1}, s{src+1}, 0")
    E(f"s_and_b32 s{srd+1}, s{srd+1}, 0xffff")
    E(f"s_mov_b32 s{srd+2}, s{S_T+1}")
    E(f"s_mov_b32 s{srd+3}, 0x20000")

def dma_tile(ldsaddr, srd, soff, voff4):
    E(f"s_add_u32 m0, s{S_WB}, {ldsaddr}")
    E("s_nop 0")
    for i in range(4):
        pol = opt['qp'] if srd == SRD_Q else opt['kvp']
        E(f"buffer_load_dwordx4 {vr(voff4+i)}, s[{srd}:{srd+3}], {soff} offen offset:{i*1024} {pol} lds")
def dma_K(slot): dma_tile(KBASE + slot*16384, SRD_K, f"s{S_KOFF}", VOK)
def dma_V(slot): dma_tile(VBASE + slot*16384, SRD_V, f"s{S_VOFF}", VOV)
QSTAGE = [KBASE + 2*16384, KBASE + 3*16384, VBASE + 2*16384, VBASE + 3*16384, Q5BASE]

E(f"s_mov_b32 s{S_KOFF}, 0")
dma_K(0)
for t in range(5):
    E(f"s_mov_b32 s{S_T+2}, {t*16384}")
    dma_tile(QSTAGE[t], SRD_Q, f"s{S_T+2}", VOK)
STAMP(0)
for i in range(4):
    E(f"v_add_u32 {vr(t2)}, {2*i}, {vr(HH)}")
    E(f"v_lshlrev_b32 {vr(t2)}, 1, {vr(t2)}")
    E(f"v_xor_b32 {vr(t2)}, {vr(t2)}, {vr(K32)}")
    E(f"v_lshl_add_u32 {vr(VOV+i)}, {vr(t2)}, 4, {vr(t1)}")
E(f"s_mov_b32 s{S_KOFF}, 16384")
dma_K(1)
E(f"s_mov_b32 s{S_VOFF}, 16384")
dma_V(0)
E(f"s_mov_b32 s{S_VOFF}, {2*16384}")
dma_V(1)
E(f"s_mov_b32 s{S_MODE}, 0")
E(f"s_mov_b32 s{S_C}, {CSCALE:#x}")
E(f"s_mov_b32 s{S_THR}, {THR:#x}")
E(f"v_lshlrev_b32 {vr(t1)}, 9, {vr(Q16)}")
for j in range(4):
    E(f"v_add_u32 {vr(t2)}, {4*j}, {vr(GG)}")
    E(f"v_xor_b32 {vr(t2)}, {vr(t2)}, {vr(Q16)}")
    E(f"v_lshl_add_u32 {vr(VAK+j)}, {vr(t2)}, 4, {vr(t1)}")
E(f"v_lshrrev_b32 {vr(t0)}, 2, {vr(LANE)}")
E(f"v_lshlrev_b32 {vr(t1)}, 9, {vr(t0)}")
E(f"v_and_b32 {vr(t2)}, 3, {vr(LANE)}")
E(f"v_lshl_add_u32 {vr(t1)}, {vr(t2)}, 3, {vr(t1)}")
E(f"v_add_u32 {vr(t1)}, {VBASE}, {vr(t1)}")
E(f"v_and_b32 {vr(t0)}, 7, {vr(t0)}")
E(f"v_xor_b32 {vr(t0)}, s{S_W}, {vr(t0)}")
for j in range(8):
    E(f"v_xor_b32 {vr(t2)}, {j}, {vr(t0)}")
    E(f"v_lshl_add_u32 {vr(VAV+j)}, {vr(t2)}, 5, {vr(t1)}")
E(f"v_lshlrev_b32 {vr(t0)}, 4, {vr(LANE)}")
E(f"v_add_u32 {vr(P5R)}, {P5BASE}, {vr(t0)}")
E(f"s_lshr_b32 s{S_T+1}, s{S_W}, 1")
E(f"s_lshl_b32 s{S_T+1}, s{S_T+1}, 10")
E(f"s_and_b32 s{S_T+2}, s{S_W}, 1")
E(f"s_lshl_b32 s{S_T+2}, s{S_T+2}, 3")
E(f"s_add_u32 s{S_T+1}, s{S_T+1}, s{S_T+2}")
E(f"v_add_u32 {vr(P5W)}, s{S_T+1}, {vr(P5R)}")
for r in range(160): E(f"v_mov_b32 {vr(r)}, 0")
for r in (L0, L0 + 1, L5): E(f"v_mov_b32 {vr(r)}, 0")
STAMP(1)
E(f"s_lshl_b32 s{S_T+1}, s{S_W}, 14")
E(f"s_and_b32 s{S_T+2}, s{S_W}, 2")
E(f"s_lshl_b32 s{S_T+2}, s{S_T+2}, 14")
E(f"s_add_u32 s{S_T+1}, s{S_T+1}, s{S_T+2}")
E(f"s_add_u32 s{S_T+1}, s{S_T+1}, {2*16384}")
for j in range(4): E(f"v_add_u32 {vr(t0+j)}, s{S_T+1}, {vr(VAK+j)}")
E(f"s_lshr_b32 s{S_T+1}, s{S_W}, 1")
E(f"s_lshl_b32 s{S_T+1}, s{S_T+1}, 13")
E(f"s_add_u32 s{S_T+1}, s{S_T+1}, {Q5BASE}")
for j in range(4): E(f"v_add_u32 {vr(t4+j)}, s{S_T+1}, {vr(VAK+j)}")
S5B = PA
E("s_waitcnt vmcnt(12)")
STAMP(2)
E("s_barrier")
def rdK0(kb, s_): E(f"ds_read_b128 {ar(Kfrag(kb,s_),4)}, {vr(VAK+(s_&3))} offset:{kb*8192+(s_>>2)*256}")
def rdQ(s_):
    for qt in range(2): E(f"ds_read_b128 {ar(Qfrag(qt,s_),4)}, {vr(t0+(s_&3))} offset:{qt*8192+(s_>>2)*256}")
    E(f"ds_read_b128 {ar(A_Q5+4*s_,4)}, {vr(t4+(s_&3))} offset:{(s_>>2)*256}")
def mf0(kb, s_):
    for qt in range(2):
        S = Sblk(0, kb, qt); c = "0" if s_ == 0 else vr(S, 4)
        E(f"{MF} {vr(S,4)}, {ar(Kfrag(kb,s_),4)}, {ar(Qfrag(qt,s_),4)}, {c}")
    S = S5 if kb == 0 else S5B; c = "0" if s_ == 0 else vr(S, 4)
    E(f"{MF} {vr(S,4)}, {ar(Kfrag(kb,s_),4)}, {ar(A_Q5+4*s_,4)}, {c}")
for s_ in range(3):
    rdK0(0, s_); rdQ(s_)
for s_ in range(8):
    if s_ + 3 < 8:
        rdK0(0, s_ + 3); rdQ(s_ + 3); E("s_waitcnt lgkmcnt(12)")
    else:
        k = s_ + 3 - 8
        for kk in range(3 * k, min(3 * k + 3, 8)): rdK0(1, kk)
        n_after = 4 * (7 - s_) + min(3 * k + 3, 8)
        E(f"s_waitcnt lgkmcnt({min(n_after, 15)})")
    mf0(0, s_)
E("s_waitcnt lgkmcnt(0)")
E("s_barrier")
STAMP(3)
_d = []
def dma_list(ldsaddr, srd, soffval, sreg, voff4):
    L_ = [f"s_mov_b32 s{sreg}, {soffval}", f"s_add_u32 m0, s{S_WB}, {ldsaddr}", "s_nop 0"]
    for i in range(4):
        L_.append(f"buffer_load_dwordx4 {vr(voff4+i)}, s[{srd}:{srd+3}], s{sreg} offen offset:{i*1024} {opt['kvp']} lds")
    return L_
_d = dma_list(KBASE + 2*16384, SRD_K, 2*16384, S_KOFF, VOK) + dma_list(KBASE + 3*16384, SRD_K, 3*16384, S_T + 4, VOK) + dma_list(VBASE + 2*16384, SRD_V, 3*16384, S_VOFF, VOV)
for s_ in range(8):
    mf0(1, s_)
    for x in _d[s_*3:(s_+1)*3] if s_ < 7 else _d[21:]: E(x)
E(f"s_mov_b32 s{S_KOFF}, {3*16384}")
E("s_nop 7")
E("s_branch L_qk0done")

LBL("L_restart")
E(f"s_mov_b32 s{S_KOFF}, 0")
dma_K(0)
E(f"s_mov_b32 s{S_KOFF}, 16384")
dma_K(1)
E(f"s_mov_b32 s{S_VOFF}, 16384")
dma_V(0)
E(f"s_mov_b32 s{S_VOFF}, {2*16384}")
dma_V(1)
E(f"s_mov_b32 s{S_KOFF}, {2*16384}")
dma_K(2)
E(f"s_mov_b32 s{S_KOFF}, {3*16384}")
dma_K(3)
E(f"s_mov_b32 s{S_VOFF}, {3*16384}")
dma_V(2)
for r in range(160): E(f"v_mov_b32 {vr(r)}, 0")
for r in (L0, L0 + 1, L5): E(f"v_mov_b32 {vr(r)}, 0")
E("s_waitcnt vmcnt(24)")
E("s_barrier")
V0 = Var(0, True, True)
def qk_both(slotoff):
    for kb in range(2):
        for s in range(8):
            E(f"ds_read_b128 {ar(Kfrag(kb,s),4)}, {vr(VAK+(s&3))} offset:{slotoff+kb*8192+(s>>2)*256}")
    E("s_waitcnt lgkmcnt(0)")
    for kb in range(2):
        for s in range(8):
            for qt in range(2):
                S = Sblk(0, kb, qt); c = "0" if s == 0 else vr(S, 4)
                E(f"{MF} {vr(S,4)}, {ar(Kfrag(kb,s),4)}, {ar(Qfrag(qt,s),4)}, {c}")
            S = S5 if kb == 0 else S5B; c = "0" if s == 0 else vr(S, 4)
            E(f"{MF} {vr(S,4)}, {ar(Kfrag(kb,s),4)}, {ar(A_Q5+4*s,4)}, {c}")
    E("s_nop 7")
    E("s_nop 1")
qk_both(0)
LBL("L_qk0done")
STAMP(4)
def cross3(regs, op):
    tmps = [t5, t6, t7]
    for sw in ("v_permlane32_swap_b32", "v_permlane16_swap_b32"):
        for r, t in zip(regs, tmps): E(f"v_mov_b32 {vr(t)}, {vr(r)}")
        for r, t in zip(regs, tmps): E(f"{sw} {vr(r)}, {vr(t)}")
        for r, t in zip(regs, tmps): E(f"{op} {vr(r)}, {vr(r)}, {vr(t)}")
def cross_op(dst, op, tmp):
    E(f"v_mov_b32 {vr(tmp)}, {vr(dst)}")
    E("s_nop 1")
    E(f"v_permlane32_swap_b32 {vr(dst)}, {vr(tmp)}")
    E("s_nop 1")
    E(f"{op} {vr(dst)}, {vr(dst)}, {vr(tmp)}")
    E(f"v_mov_b32 {vr(tmp)}, {vr(dst)}")
    E("s_nop 1")
    E(f"v_permlane16_swap_b32 {vr(dst)}, {vr(tmp)}")
    E("s_nop 1")
    E(f"{op} {vr(dst)}, {vr(dst)}, {vr(tmp)}")
def max8(dst, a, b, init):
    if init:
        E(f"v_max3_f32 {vr(dst)}, {vr(a)}, {vr(a+1)}, {vr(a+2)}")
        E(f"v_max3_f32 {vr(dst)}, {vr(dst)}, {vr(a+3)}, {vr(b)}")
        E(f"v_max3_f32 {vr(dst)}, {vr(dst)}, {vr(b+1)}, {vr(b+2)}")
        E(f"v_max_f32 {vr(dst)}, {vr(dst)}, {vr(b+3)}")
    else:
        for x in (a, a + 2, b, b + 2):
            E(f"v_max3_f32 {vr(dst)}, {vr(dst)}, {vr(x)}, {vr(x+1)}")
E(f"s_cmp_eq_u32 s{S_MODE}, 0")
E("s_cbranch_scc0 L_have_max")
for qt in range(2):
    max8(MC0 + qt, Sblk(0, 0, qt), Sblk(0, 1, qt), True)
max8(MC5, S5, S5B, True)
cross3((MC0, MC0 + 1, MC5), "v_max_f32")
for r in (MC0, MC0 + 1, MC5):
    E(f"v_mul_f32 {vr(r)}, s{S_C}, {vr(r)}")
LBL("L_have_max")
E(f"s_and_b32 s{S_T}, s{S_W}, 1")
E(f"s_cmp_eq_u32 s{S_T}, 0")
E("s_cbranch_scc1 L_s5ok")
for r in range(4): E(f"v_mov_b32 {vr(S5+r)}, {vr(S5B+r)}")
LBL("L_s5ok")
_s5 = softmax5_stream(0, V0)
for r in range(4): E(_s5["F"][r].text)
for r in range(4): E(_s5["E"][r].text)
E("s_nop 0")
for r in range(4): E(_s5["A"][r].text)
for r in (1, 3): E(_s5["C"][r].text)
E(_s5["W"].text)
STAMP(5)
for _ in range(opt["idle"]): E("s_sleep 64")
E("s_waitcnt vmcnt(16) lgkmcnt(0)")
STAMP(6)
E("s_barrier")

variants = [Var(0, True, True), Var(1, True, True)]
if opt["skip9"]:
    variants += [Var(0, True, False), Var(1, True, False), Var(0, False, False)]
E(f"s_and_b32 s{S_T}, s{S_W}, 1")
if opt["skip9"]:
    E(f"s_cmp_eq_u32 s15, 0")
    E("s_cbranch_scc1 L_disp_full")
    E(f"s_cmp_ge_u32 s{S_W}, 2")
    E(f"s_cbranch_scc1 L_var_{variants[4].name}")
    E(f"s_cmp_eq_u32 s{S_T}, 0")
    E(f"s_cbranch_scc1 L_var_{variants[2].name}")
    E(f"s_branch L_var_{variants[3].name}")
    LBL("L_disp_full")
E(f"s_cmp_eq_u32 s{S_T}, 1")
E(f"s_cbranch_scc1 L_var_{variants[1].name}")

totE = totH = totW = 0
for V in variants:
    def step_for(i):
        if i <= 27: return build_step(i, V, dma=(True, True))
        if i == 28: return build_step(i, V, dma=(True, False))
        if i == 29: return build_step(i, V, dma=(False, False), vm=8)
        if i == 30: return build_step(i, V, dma=(False, False), kr=False, vm=0)
        if i == 31: return build_step(i, V, qk=False, kr=False, dma=(False, False), sm_next=False, bar=False, p5r=False, vm=None, vr_next=False)
    allsteps = [step_for(i) for i in range(32)]
    pro = build_step(-1, V, dma=(True, True))
    xi = max(k for k, it in enumerate(pro) if it.kind == "bar")
    pro_tail = [it for it in pro[xi + 1:] if it.kind != "mfma"]
    if any(k in ("MK", "KO") and j == 1 for g in SCHEDS[V.par] for k, j in g):
        dg = dma_group(-1); pro_tail = [dg["KO"], dg["MK"]] + pro_tail
    totE += symbolic_check([(-1, [I("", "bar")] + pro_tail)] + [(i, s) for i, s in enumerate(allsteps)], -1)
    LBL(f"L_var_{V.name}")
    pt = [x for x in pro_tail if x.kind == "lds"] + [x for x in pro_tail if x.kind in ("salu", "dma")] + [x for x in pro_tail if x.kind in ("valu", "trans") and x.text.startswith("v_fma")] \
         + [x for x in pro_tail if x.kind == "trans"] + [x for x in pro_tail if x.kind == "valu" and not x.text.startswith("v_fma")] + [x for x in pro_tail if x.kind == "wait"]
    assert len(pt) == len(pro_tail)
    for it in pad_fix(pt): E(it.text)
    E(f"s_mov_b32 s{S_IT}, 0")
    if opt["stamps"]:
        E("s_memtime s[66:67]")
        E("s_memrealtime s[56:57]")
        E("s_waitcnt lgkmcnt(0)")
    out.append(".p2align 6")
    LBL(f"L_loop_{V.name}")
    for st in range(4):
        prev = pad_fix(build_step(st + 3, V, dma=(True, True))); seq = pad_fix(build_step(st + 4, V, dma=(True, True)), prev[-10:])
        totH += check_hazards(prev[-14:] + seq, f"{V.name}.step{st}")
        if not EXPERIMENT: totW += check_waits(prev + seq)
        for it in seq: E(it.text)
    E(f"s_add_u32 s{S_IT}, s{S_IT}, 1")
    E(f"s_cmp_lt_u32 s{S_IT}, 7")
    E(f"s_cbranch_scc1 L_loop_{V.name}")
    for i in range(28, 32):
        prev = allsteps[i - 1]; seq = allsteps[i]
        seq = pad_fix(seq, prev[-10:])
        totH += check_hazards(prev[-14:] + seq, f"{V.name}.tail{i}")
        if not EXPERIMENT: totW += check_waits(prev + seq)
        for it in seq: E(it.text)
    if V is not variants[-1]: E("s_branch L_epi")
    if opt["verbose"]:
        if V is variants[0]:
            pat = PAT_B + PAT_A; over = 0
            for p in range(80):
                c = sum(2 if k in ("E", "E5") else 1 for k, _ in SCHED[p]); over += max(0, c - 2)
                sys.stderr.write(f"p {p:2d} {pat[p]} {c} {'OVER' if c > 2 else '    '} " + " ".join(f"{k}{j}" for k, j in SCHED[p]) + "\n")
            sys.stderr.write(f"overflow {over}\n")
        sys.stderr.write(f"variant {V.name}: instrs/step {len(build_step(4, V, dma=(True, True)))}\n")
assert EXPERIMENT or (totE == 0 and totH == 0 and totW == 0), (totE, totH, totW)

LBL("L_epi")
if opt["stamps"]:
    E("s_memtime s[68:69]")
    E("s_memrealtime s[58:59]")
    E("s_waitcnt lgkmcnt(0)")
E(f"v_mbcnt_lo_u32_b32 {vr(LANE)}, -1, 0")
E(f"v_mbcnt_hi_u32_b32 {vr(LANE)}, -1, {vr(LANE)}")
cross3((L0, L0 + 1, L5), "v_add_f32")
E(f"v_and_b32 {vr(Q16)}, 15, {vr(LANE)}")
E(f"v_lshrrev_b32 {vr(GG)}, 4, {vr(LANE)}")
E(f"s_lshr_b32 s{S_T}, s{S_W}, 1")
E(f"s_lshl_b32 s{S_T}, s{S_T}, 7")
E(f"s_and_b32 s{S_T+1}, s{S_W}, 1")
E(f"s_lshl_b32 s{S_T+1}, s{S_T+1}, 6")
E(f"s_add_u32 s{S_T}, s{S_T}, s{S_T+1}")
E(f"s_add_u32 s{S_T}, s{S_T}, {XBASE}")
E(f"v_lshlrev_b32 {vr(t0)}, 2, {vr(Q16)}")
E(f"v_add_u32 {vr(t1)}, s{S_T}, {vr(t0)}")
E(f"ds_write_b32 {vr(t1)}, {vr(L5)}")
E(f"v_max3_f32 {vr(t1)}, {vr(L0)}, {vr(L0+1)}, {vr(L5)}")
E(f"v_cmp_lt_f32 vcc, s{S_THR}, {vr(t1)}")
E(f"v_rcp_f32 {vr(L0)}, {vr(L0)}")
E(f"v_rcp_f32 {vr(L0+1)}, {vr(L0+1)}")
E(f"s_lshl_b32 s{S_T+3}, s{S_W}, 2")
E(f"s_add_u32 s{S_T+3}, s{S_T+3}, {XBASE+256}")
E(f"v_mov_b32 {vr(t2)}, s{S_T+3}")
E("s_cmp_lg_u64 vcc, 0")
E(f"s_cselect_b32 s{S_T+2}, 1, 0")
E(f"v_mov_b32 {vr(t1)}, s{S_T+2}")
E(f"ds_write_b32 {vr(t2)}, {vr(t1)}")
EA = SA
SO = SB
E(f"v_and_b32 {vr(t4)}, 1, {vr(GG)}")
E(f"v_lshlrev_b32 {vr(t4)}, 1, {vr(t4)}")
E(f"v_lshrrev_b32 {vr(t5)}, 1, {vr(GG)}")
E(f"v_xor_b32 {vr(t6)}, {vr(t4)}, {vr(t5)}")
E(f"s_lshl_b32 s{S_T}, s{S_W}, 1")
E(f"v_xor_b32 {vr(t6)}, s{S_T}, {vr(t6)}")
E(f"v_xor_b32 {vr(t6)}, {vr(t6)}, {vr(Q16)}")
E(f"v_lshlrev_b32 {vr(t7)}, 9, {vr(Q16)}")
E(f"s_lshl_b32 s{S_T+1}, s{S_W}, 14")
E(f"v_add_u32 {vr(t3)}, s{S_T+1}, {vr(t7)}")
for j in range(4):
    E(f"v_xor_b32 {vr(t2)}, {4*j}, {vr(t6)}")
    E(f"v_lshl_add_u32 {vr(EA+j)}, {vr(t2)}, 4, {vr(t3)}")
E(f"v_lshlrev_b32 {vr(t4)}, 2, {vr(t4)}")
E(f"v_add_u32 {vr(t4)}, {vr(t4)}, {vr(t5)}")
E(f"v_add_u32 {vr(t4)}, s{S_T}, {vr(t4)}")
E(f"v_xor_b32 {vr(t4)}, {vr(t4)}, {vr(Q16)}")
E(f"v_lshl_add_u32 {vr(EA+4)}, {vr(t4)}, 4, {vr(t7)}")
E(f"v_add_u32 {vr(EA+4)}, {VBASE}, {vr(EA+4)}")
def stage_pair(a, b, rpair, hi, addr, off):
    sel = "op_sel:[0,1] op_sel_hi:[1,1]" if hi else "op_sel_hi:[1,0]"
    if opt["pkmul"]:
        for x in (a, a + 2, b, b + 2):
            E(f"v_pk_mul_f32 {vr(x,2)}, {vr(x,2)}, {vr(rpair,2)} {sel}")
    else:
        for r in range(4):
            E(f"v_mul_f32 {vr(a+r)}, {vr(a+r)}, {vr(rpair+hi)}")
            E(f"v_mul_f32 {vr(b+r)}, {vr(b+r)}, {vr(rpair+hi)}")
    E(f"v_cvt_pk_bf16_f32 {vr(a)}, {vr(a)}, {vr(a+1)}")
    E(f"v_cvt_pk_bf16_f32 {vr(a+1)}, {vr(a+2)}, {vr(a+3)}")
    E(f"v_cvt_pk_bf16_f32 {vr(a+2)}, {vr(b)}, {vr(b+1)}")
    E(f"v_cvt_pk_bf16_f32 {vr(a+3)}, {vr(b+2)}, {vr(b+3)}")
    return [f"v_permlane16_swap_b32 {vr(a)}, {vr(a+2)}", f"v_permlane16_swap_b32 {vr(a+1)}, {vr(a+3)}", f"ds_write_b128 {vr(addr)}, {vr(a,4)} offset:{off}"]
pend = []
for qt in range(2):
    for i in range(0, 16, 2):
        nxt = stage_pair(O_OWN + 8*i + 4*qt, O_OWN + 8*(i+1) + 4*qt, L0, qt, EA + ((i >> 1) & 3), qt*8192 + (i >> 3)*256)
        for x in pend: E(x)
        pend = nxt
E(f"v_and_b32 {vr(K32)}, 31, {vr(LANE)}")
E(f"v_lshrrev_b32 {vr(HH)}, 5, {vr(LANE)}")
for x in pend: E(x)
E(f"v_lshlrev_b32 {vr(t3)}, 9, {vr(HH)}")
E(f"v_add_u32 {vr(t3)}, s{S_T+1}, {vr(t3)}")
for j in range(8):
    E(f"v_add_u32 {vr(t2)}, {2*j}, {vr(HH)}")
    E(f"v_xor_b32 {vr(t2)}, {vr(t2)}, {vr(K32)}")
    E(f"v_lshl_add_u32 {vr(SO+j)}, {vr(t2)}, 4, {vr(t3)}")
E(f"v_lshlrev_b32 {vr(t7)}, 4, {vr(LANE)}")
E(f"v_add_u32 {vr(t6)}, s{S_T+1}, {vr(t7)}")
E("s_waitcnt lgkmcnt(0)")
E("s_barrier")
STAMP(7)
E(f"v_add_u32 {vr(t0)}, {XBASE}, {vr(t0)}")
E(f"ds_read_b32 {vr(t1)}, {vr(t0)}")
E(f"ds_read_b32 {vr(t2)}, {vr(t0)} offset:64")
E(f"ds_read_b32 {vr(t3)}, {vr(t0)} offset:128")
E(f"ds_read_b32 {vr(t4)}, {vr(t0)} offset:192")
E(f"v_mov_b32 {vr(t5)}, {XBASE+256}")
E(f"ds_read_b128 {vr(PA,4)}, {vr(t5)}")
for j in range(16):
    E(f"ds_read_b128 {vr(4*j,4)}, {vr(t6)} offset:{j*1024}")
E("s_waitcnt lgkmcnt(15)")
E(f"v_or_b32 {vr(PA)}, {vr(PA)}, {vr(PA+1)}")
E(f"v_or3_b32 {vr(PA)}, {vr(PA)}, {vr(PA+2)}, {vr(PA+3)}")
R89 = PB
E(f"v_add_f32 {vr(R89)}, {vr(t1)}, {vr(t2)}")
E(f"v_readfirstlane_b32 s{S_T}, {vr(PA)}")
E(f"v_add_f32 {vr(R89+1)}, {vr(t3)}, {vr(t4)}")
E(f"v_rcp_f32 {vr(R89)}, {vr(R89)}")
E(f"v_rcp_f32 {vr(R89+1)}, {vr(R89+1)}")
E("s_nop 0")
E(f"s_cmp_lg_u32 s{S_MODE}, 0")
E("s_cbranch_scc1 L_final")
E(f"s_cmp_lg_u32 s{S_T}, 0")
E("s_cbranch_scc1 L_maxpass")
LBL("L_final")
for j in range(16):
    if j % 4 == 0: E(f"s_mov_b32 s{S_T}, {(j>>2)*4096}")
    E(f"s_waitcnt lgkmcnt({15-j})")
    E(f"buffer_store_dwordx4 {vr(4*j,4)}, {vr(SO+(j&7))}, s[{SRD_O}:{SRD_O+3}], s{S_T} offen offset:{(j&3)*1024} {opt['op']}")
pend = []
for q5 in range(2):
    for k in (0, 2):
        nxt = stage_pair(O5 + 8*k + 4*q5, O5 + 8*(k+1) + 4*q5, R89, q5, EA + 4, q5*8192 + (k >> 1)*256)
        for x in pend: E(x)
        pend = nxt
E("s_nop 1")
for x in pend: E(x)
E(f"v_add_u32 {vr(t1)}, s{S_WB}, {vr(t7)}")
E(f"v_add_u32 {vr(t1)}, {VBASE}, {vr(t1)}")
E("s_waitcnt lgkmcnt(0)")
E("s_barrier")
STAMP(8)
for i in range(4):
    E(f"ds_read_b128 {vr(64+4*i,4)}, {vr(t1)} offset:{i*1024}")
E(f"s_mov_b32 s{S_T}, {4*16384}")
for i in range(4):
    E(f"s_waitcnt lgkmcnt({3-i})")
    E(f"buffer_store_dwordx4 {vr(64+4*i,4)}, {vr(VOK+i)}, s[{SRD_O}:{SRD_O+3}], s{S_T} offen offset:{i*1024} {opt['op']}")
if opt["stamps"]:
    E("s_waitcnt vmcnt(0)")
    E("s_memrealtime s[62:63]")
    E("s_memtime s[70:71]")
    E("s_waitcnt lgkmcnt(0)")
    E(f"s_mov_b32 s72, s{S_WS}")
    E(f"s_and_b32 s73, s{S_WS+1}, 0xffff")
    E("s_mov_b32 s74, 262144")
    E("s_mov_b32 s75, 0x20000")
    E("s_sub_u32 s66, s66, s64")
    E("s_sub_u32 s68, s68, s64")
    E("s_sub_u32 s70, s70, s64")
    for k, sreg in enumerate((60, 61, 62, 63)): E(f"v_mov_b32 v{k}, s{sreg}")
    E("v_mov_b32 v4, s66"); E("v_mov_b32 v5, s68"); E("v_mov_b32 v6, s70"); E("s_sub_u32 s58, s58, s56"); E("v_mov_b32 v7, s58")
    E("s_lshl_b32 s76, s2, 6")
    E(f"s_lshl_b32 s77, s{S_W}, 4")
    E("s_add_u32 s76, s76, s77")
    E("v_mov_b32 v8, s76")
    E(f"v_cmp_eq_u32 vcc, 0, {vr(LANE)}")
    E("s_and_saveexec_b64 s[78:79], vcc")
    E("buffer_store_dwordx4 v[0:3], v8, s[72:75], 0 offen")
    E("v_add_u32 v8, 0x8000, v8")
    E("buffer_store_dwordx4 v[4:7], v8, s[72:75], 0 offen")
    for q in range(3):
        for k in range(4):
            kk = q*4+k
            if kk < 9:
                E(f"s_sub_u32 s{80+2*kk}, s{80+2*kk}, s64")
                E(f"v_mov_b32 v{12+k}, s{80+2*kk}")
        E(f"v_add_u32 v8, 0x4000, v8")
        E("s_nop 1")
        E("buffer_store_dwordx4 v[12:15], v8, s[72:75], 0 offen")
E("s_endpgm")

LBL("L_maxpass")
E(f"s_mov_b32 s{S_MODE}, 1")
for r in (MC0, MC0 + 1, MC5): E(f"v_mov_b32 {vr(r)}, 0xff800000")
E(f"s_mov_b32 s{S_KOFF}, 0")
LBL("L_maxloop")
E("s_barrier")
dma_K(0)
E("s_waitcnt vmcnt(0)")
E("s_barrier")
qk_both(0)
for qt in range(2): max8(MC0 + qt, Sblk(0, 0, qt), Sblk(0, 1, qt), False)
max8(MC5, S5, S5B, False)
E(f"s_add_u32 s{S_KOFF}, s{S_KOFF}, 16384")
E(f"s_cmp_lt_u32 s{S_KOFF}, 524288")
E("s_cbranch_scc1 L_maxloop")
for r in (MC0, MC0 + 1, MC5):
    cross_op(r, "v_max_f32", t7)
    E(f"v_mul_f32 {vr(r)}, s{S_C}, {vr(r)}")
E("s_barrier")
E("s_branch L_restart")
LBL("L_done")
E("s_endpgm")

tail = ['.section .rodata,"a"', ".p2align 6", f".amdhsa_kernel {NAME}",
        "  .amdhsa_next_free_vgpr 512", "  .amdhsa_next_free_sgpr 102", "  .amdhsa_accum_offset 256",
        "  .amdhsa_group_segment_fixed_size 0", "  .amdhsa_kernarg_size 48", "  .amdhsa_user_sgpr_count 2",
        "  .amdhsa_user_sgpr_kernarg_segment_ptr 1", "  .amdhsa_system_sgpr_workgroup_id_x 1", ".end_amdhsa_kernel"]
print("\n".join(hdr + out + tail))
```

```python
import sys, struct

opt = dict(kvp="nt", qp="nt", op="nt", stamps=0, verbose=0,
           vr0=0, vr1=33, s5a=27, s5b=37, kr0=40, kr1=72, dma0=41, dma1=78, sm0=41, sm1=37,
           nodma=0, nolds=0, novalu=0, nobar=0, nomfma=0, skip9=0, prodma=1, xdiag=0, diag=0, border=0, patb1="", pata1="", l2hit=0, idle=0, pkmul=1, dalone=0, dlast=0,
           patb="KEKKKEKDKEKKVKEKDKEKVKKEKDKEKVKVEVDVEVVV",
           pata="VEVVDVEVVVEVVeVeVDeVeVVWEVVVEVVVVVVEDEDX")
for a in sys.argv[1:]:
    k, v = a.split("=", 1)
    opt[k] = type(opt[k])(v)
EXPERIMENT = opt["xdiag"] or opt["l2hit"] or opt["nodma"] or opt["nolds"] or opt["novalu"] or opt["nobar"] or opt["nomfma"]

def f2u(x): return struct.unpack("<I", struct.pack("<f", x))[0]
CSCALE = f2u(1.4426950408889634 / 16.0)
THR = f2u(2.0 ** 30)
NAME = "standalone__mha_softmax__near_ridge_kernel"

O_OWN = 0; O5 = 128; SA = 160; SB = 176; S5 = 192; PA = 196; PB = 204; P5OUT = 212
L0 = 214; L5 = 216; MC0 = 217; MC5 = 219
VAK = 220; VAV = 224; VOK = 232; VOV = 236; P5W = 240; P5R = 241
T = 242
A_V = 0; A_K = 64; A_Q = 128; A_Q5 = 192; A_P5F = 224
KBASE = 0; VBASE = 65536; P5BASE = 131072; XBASE = 135168; Q5BASE = 136192; LDS_BYTES = 152576
S_W = 16
SRD_K = 20; SRD_V = 24; SRD_Q = 28; SRD_O = 32
S_KOFF = 36; S_VOFF = 37; S_WB = 38; S_C = 39; S_IT = 40; S_MODE = 41; S_THR = 42; S_HALF = 15
S_T = 48
S_WS = 12

out = []
def E(s): out.append("  " + s)
def LBL(s): out.append(s + ":")
def STAMP(k):
    if opt["stamps"] and not opt["diag"]: out.append(f"  s_memtime s[{80+2*k}:{81+2*k}]")
def vr(b, n=1): return f"v{b}" if n == 1 else f"v[{b}:{b+n-1}]"
def ar(b, n=1): return f"a{b}" if n == 1 else f"a[{b}:{b+n-1}]"
def R(pref, b, n): return [f"{pref}{b+i}" for i in range(n)]

class I:
    def __init__(s, text, kind, rd=(), wr=(), lds=None, prod=None, exp=None, mem=None):
        s.text, s.kind, s.rd, s.wr, s.lds = text, kind, list(rd), list(wr), lds
        s.prod = prod; s.exp = exp or {}; s.mem = mem
        s.slots = 2 if kind == "trans" else 1

def Sreg(n): return SA if n % 2 == 0 else SB
def Preg(n): return PA if n % 2 == 0 else PB
def P5Freg(n): return A_P5F + 8 * (n % 2)
def Sblk(n, kb, qt): return Sreg(n) + 8 * kb + 4 * qt
def Kfrag(kb, s): return A_K + 4 * (8 * kb + s)
def Qfrag(qt, s): return A_Q + 32 * qt + 4 * s
I_ORDER = [1, 2, 3, 5, 6, 7, 9, 10, 11, 13, 14, 15, 0, 4, 8, 12]
MF = "v_mfma_f32_16x16x32_bf16"

class Var:
    def __init__(s, kh, q5, pv9, par=None):
        s.kh, s.q5, s.pv9 = kh, q5, pv9; s.par = kh if par is None else par; s.name = f"k{kh}q{int(q5)}p{int(pv9)}"

def qk_mfmas(n, V, full=False):
    seq = []
    for s_ in range(8):
        f = Kfrag(V.kh, s_)
        c = "0" if s_ == 0 else vr(S5, 4)
        e = {r: ("K", n, V.kh, s_) for r in R("a", f, 4)}
        it = I(f"{MF} {vr(S5,4)}, {ar(f,4)}, {ar(A_Q5+4*s_,4)}, {c}", "mfma",
               rd=R("a", f, 4) + R("a", A_Q5+4*s_, 4) + (R("v", S5, 4) if s_ else []), wr=R("v", S5, 4), prod=("S5", n, s_), exp=e)
        seq.append(it if V.q5 else None)
    for kb in range(2):
        for s_ in range(8):
            f = Kfrag(kb, s_)
            for qt in range(2):
                S = Sblk(n, kb, qt)
                c = "0" if s_ == 0 else vr(S, 4)
                e = {r: ("K", n, kb, s_) for r in R("a", f, 4)}
                seq.append(I(f"{MF} {vr(S,4)}, {ar(f,4)}, {ar(Qfrag(qt,s_),4)}, {c}", "mfma",
                             rd=R("a", f, 4) + R("a", Qfrag(qt, s_), 4) + (R("v", S, 4) if s_ else []), wr=R("v", S, 4), prod=("S", n, kb, qt, s_), exp=e))
    return seq

def pv_mfmas(n, V):
    seq = []
    for i in I_ORDER:
        f = A_V + 4 * i
        for qt in range(2):
            o = O_OWN + 8 * i + 4 * qt; p = Preg(n) + 4 * qt
            e = {r: ("V", n, i) for r in R("a", f, 4)}
            e.update({f"v{p+k}": ("P", n, qt, k) for k in range(4)})
            seq.append(I(f"{MF} {vr(o,4)}, {ar(f,4)}, {vr(p,4)}, {vr(o,4)}", "mfma", rd=R("a", f, 4) + R("v", p, 4) + R("v", o, 4), wr=R("v", o, 4), exp=e))
        if i % 4 == 0:
            for q5 in range(2):
                o = O5 + 8 * (i // 4) + 4 * q5; p = P5Freg(n) + 4 * q5
                e = {r: ("V", n, i) for r in R("a", f, 4)}
                e.update({r: ("P5F", n, q5) for r in R("a", p, 4)})
                it = I(f"{MF} {vr(o,4)}, {ar(f,4)}, {ar(p,4)}, {vr(o,4)}", "mfma", rd=R("a", f, 4) + R("a", p, 4) + R("v", o, 4), wr=R("v", o, 4), exp=e)
                seq.append(it if (q5 == 0 or V.pv9) else None)
    return seq

def softmax_items(regs, mc, l, last, tg, n):
    pass

def softmax_stream(n, V):
    units = []
    for qt in range(2):
        for kb in range(2):
            for r in range(4):
                units.append((kb, qt, r))
    P = Preg(n)
    fma, ex, ad, cv = [], [], [], {}
    for u, (kb, qt, r) in enumerate(units):
        x = Sblk(n, kb, qt) + r
        fma.append(I(f"v_fma_f32 {vr(x)}, {vr(x)}, s{S_C}, -{vr(MC0+qt)}", "valu", rd=[f"v{x}", f"v{MC0+qt}"], wr=[f"v{x}"], prod=("X", n, u), exp={f"v{x}": ("S", n, kb, qt, 7)}))
        ex.append(I(f"v_exp_f32 {vr(x)}, {vr(x)}", "trans", rd=[f"v{x}"], wr=[f"v{x}"], prod=("E", n, u), exp={f"v{x}": ("X", n, u)}))
        ad.append(I(f"v_add_f32 {vr(L0+qt)}, {vr(L0+qt)}, {vr(x)}", "valu", rd=[f"v{x}", f"v{L0+qt}"], wr=[f"v{L0+qt}"], exp={f"v{x}": ("E", n, u)}))
        if r % 2 == 1:
            d = P + 4 * qt + 2 * kb + r // 2
            cv[u] = I(f"v_cvt_pk_bf16_f32 {vr(d)}, {vr(x-1)}, {vr(x)}", "valu", rd=[f"v{x-1}", f"v{x}"], wr=[f"v{d}"], prod=("P", n, qt, 2*kb + r//2),
                      exp={f"v{x-1}": ("E", n, u-1), f"v{x}": ("E", n, u)})
    return dict(F=fma, E=ex, A=ad, C=cv)

def interleave(fma, ex, ad, cv):
    n = len(fma); seq = []
    for r in range(n + 2):
        if r < n: seq.append(fma[r])
        if 0 <= r - 1 < n: seq.append(ex[r-1])
        if 0 <= r - 2 < n:
            seq.append(ad[r-2])
            if (r - 2) in cv: seq.append(cv[r-2])
    return seq

def softmax5_stream(n, V):
    fma, ex, ad, cv = [], [], [], {}
    for r in range(4):
        x = S5 + r
        fma.append(I(f"v_fma_f32 {vr(x)}, {vr(x)}, s{S_C}, -{vr(MC5)}", "valu", rd=[f"v{x}", f"v{MC5}"], wr=[f"v{x}"], prod=("X5", n, r), exp={f"v{x}": ("S5", n, 7)}))
        ex.append(I(f"v_exp_f32 {vr(x)}, {vr(x)}", "trans", rd=[f"v{x}"], wr=[f"v{x}"], prod=("E5", n, r), exp={f"v{x}": ("X5", n, r)}))
        ad.append(I(f"v_add_f32 {vr(L5)}, {vr(L5)}, {vr(x)}", "valu", rd=[f"v{x}", f"v{L5}"], wr=[f"v{L5}"], exp={f"v{x}": ("E5", n, r)}))
        if r % 2 == 1:
            cv[r] = I(f"v_cvt_pk_bf16_f32 {vr(P5OUT+r//2)}, {vr(x-1)}, {vr(x)}", "valu", rd=[f"v{x-1}", f"v{x}"], wr=[f"v{P5OUT+r//2}"], prod=("P5", n, r//2),
                      exp={f"v{x-1}": ("E5", n, r-1), f"v{x}": ("E5", n, r)})
    W = I(f"ds_write_b64 {vr(P5W)}, {vr(P5OUT,2)} offset:{(n%2)*2048}", "lds", rd=R("v", P5OUT, 2), lds="w",
          exp={f"v{P5OUT+k}": ("P5", n, k) for k in range(2)}, mem=("wP", n))
    return dict(F=fma, E=ex, A=ad, C=cv, W=W)

def k_reads(n, V):
    slot = n % 4; seq = []
    for kb in (V.kh, 1 - V.kh):
        for s in range(8):
            f = Kfrag(kb, s)
            seq.append(I(f"ds_read_b128 {ar(f,4)}, {vr(VAK+(s&3))} offset:{slot*16384+kb*8192+(s>>2)*256}", "lds", wr=R("a", f, 4), lds="r", prod=("K", n, kb, s), mem=("rK", n)))
    return seq

def v_reads(n):
    slot = n % 4; seq = []
    for i in I_ORDER:
        f = A_V + 4 * i
        for jj in range(2):
            off = slot*16384 + jj*8192 + (i >> 3)*256
            seq.append(I(f"ds_read_b64_tr_b16 {ar(f+2*jj,2)}, {vr(VAV+(i&7))} offset:{off}", "lds", wr=R("a", f+2*jj, 2), lds="r", prod=("V", n, i), mem=("rV", n)))
    return seq

def p5_reads(n, V):
    return [(I(f"ds_read_b128 {ar(P5Freg(n)+4*q,4)}, {vr(P5R)} offset:{(n%2)*2048+q*1024}", "lds", wr=R("a", P5Freg(n)+4*q, 4), lds="r", prod=("P5F", n, q), mem=("rP", n))
             if (q == 0 or V.pv9) else None) for q in range(2)]

def dma_group(j):
    ks, vs = (j + 5) % 4, (j + 4) % 4
    d = {"MK": I(f"s_add_u32 m0, s{S_WB}, {KBASE+ks*16384}", "salu"), "KO": I(f"s_add_u32 s{S_KOFF}, s{S_KOFF}, {0 if opt['l2hit'] else 16384}", "salu"),
         "MV": I(f"s_add_u32 m0, s{S_WB}, {VBASE+vs*16384}", "salu"), "D": []}
    for i in range(4):
        d["D"].append(I(f"buffer_load_dwordx4 {vr(VOK+i)}, s[{SRD_K}:{SRD_K+3}], s{S_KOFF} offen offset:{i*1024} {opt['kvp']} lds", "dma", mem=("wK", j+5)))
    for i in range(4):
        d["D"].append(I(f"buffer_load_dwordx4 {vr(VOV+i)}, s[{SRD_V}:{SRD_V+3}], s{S_KOFF} offen offset:{i*1024} {opt['kvp']} lds", "dma", mem=("wV", j+4)))
    return d

PAT_B = opt["patb"]
PAT_A = opt["pata"]
assert len(PAT_B) == 40 and len(PAT_A) == 40
def make_schedule(PAT_B, PAT_A):
    pat = PAT_B + PAT_A
    gaps = [[] for _ in range(80)]
    cnt = {}
    posE = {}; posE5 = {}; posD = {}
    for p, t in enumerate(pat):
        if t == "X" or t == "-": continue
        n = cnt.get(t, 0); cnt[t] = n + 1
        key = {"K": "K", "V": "V", "E": "E", "D": "D", "e": "E5", "W": "W"}[t]
        gaps[p].append((key, n))
        if t == "E": posE[n] = p
        if t == "e": posE5[n] = p
        if t == "D": posD[n] = p
    assert cnt == {"K": 18, "V": 32, "E": 16, "D": 8, "e": 4, "W": 1}, cnt
    posW = pat.index("W")
    items = []
    for u in range(16):
        items.append((("F", u), 0 if (u % 8) < 4 else 4, posE[u] - 1))
        items.append((("A", u), posE[u] + 1, 79))
        if u % 2 == 1: items.append((("C", u), posE[u] + 1, 78))
    for r in range(4):
        items.append((("F5", r), 51, posE5[r] - 1))
        items.append((("A5", r), posE5[r] + 1, 79))
        if r % 2 == 1: items.append((("C5", r), posE5[r] + 1, posW - 1))
    if posD[0] < 3:
        items.append((("MK", 1), 60, 78))
        items.append((("KO", 1), 60, 78))
    else:
        items.append((("MK", 0), 0, posD[0] - 1))
        items.append((("KO", 0), 0, posD[0] - 1))
    items.append((("MV", 0), posD[3] + 1, posD[4] - 1))
    done = set()
    for p in range(80):
        free = 2 - sum(2 if k in ("E", "E5") else 1 for k, _ in gaps[p])
        if pat[p] == "X": free = 0
        if pat[p] == "D" and opt["dalone"]: free = 0
        if p == 39: free -= 1
        while True:
            cand = [(dl, key) for key, e, dl in items if key not in done and e <= p]
            cand = [c for c in cand if not (c[1][0] in ("A", "A5") and c[1][1] > 0 and (c[1][0], c[1][1] - 1) not in done and False)]
            cand.sort()
            if not cand: break
            dl, key = cand[0]
            if free <= 0 and dl > p: break
            gaps[p].append(key); done.add(key); free -= 1
    assert len(done) == len(items)
    return gaps
SCHED = make_schedule(PAT_B, PAT_A)
SCHEDS = {0: SCHED, 1: make_schedule(opt['patb1'] or PAT_B, opt['pata1'] or PAT_A)}

def build_step(i, V, qk=True, kr=True, dma=True, sm_next=True, vm=16, bar=True, p5r=True, vr_next=True):
    mA = qk_mfmas(i + 1, V); mB = pv_mfmas(i, V)
    def resolve(key, n):
        k, j = key
        if k == "K":
            it = (k_reads(n + 1, V) + p5_reads(n, V))[KORD[j]]
            if it is None: return None
            if KORD[j] < 16 and not kr: return None
            if KORD[j] >= 16 and not p5r: return None
            return it
        if k == "V": return v_reads(n)[j]
        if k in ("E", "F", "A", "C"): return softmax_stream(n, V)[k][j]
        if k in ("E5", "F5", "A5", "C5"): return softmax5_stream(n + 1, V)[k[0]][j] if (V.q5 and qk) else None
        if k == "W": return softmax5_stream(n + 1, V)["W"] if (V.q5 and qk) else None
        if k == "D": return None if opt["nodma"] else dma_group(n - 1)["D"][j]
        if k in ("MK", "KO", "MV"): return dma_group(n - 1 + j)[k]
    groups = []
    for ph, (ms, p0, n) in enumerate(((mA, 40, i), (mB, 0, i + 1))):
        for g in range(40):
            p = p0 + g; fl = []
            for key in SCHEDS[V.par][p]:
                k = key[0]
                if k in ("D", "MK", "KO", "MV") and not (dma[1] if (k in ("MK", "KO") and key[1] == 1) else dma_cur_flag(i, ph, dma)): continue
                if ph == 1 and k in ("E", "F", "A", "C") and not sm_next: continue
                if ph == 1 and k == "V" and not vr_next: continue
                if opt["nolds"] and k in ("K", "V"): continue
                if opt["novalu"] and k in ("E", "F", "A", "C", "E5", "F5", "A5", "C5", "W"): continue
                it = resolve(key, n)
                if it is not None: fl.append(it)
            m = ms[g] if (qk or ph == 1) else None
            if m is None and groups and not (ph == 1 and g == 0): groups[-1][1].extend(fl)
            else: groups.append([m, fl])
            if p == 79:
                w = "s_waitcnt lgkmcnt(0)" if (vm is None or opt["nodma"]) else f"s_waitcnt vmcnt({vm}) lgkmcnt(0)"
                if opt["xdiag"] and vm is not None:
                    seqx = [I("s_waitcnt lgkmcnt(0)", "wait", lds=0), I("s_memtime s[92:93]", "wait", lds=0), I("s_waitcnt lgkmcnt(0)", "wait", lds=0),
                            I(f"s_waitcnt vmcnt({vm})", "wait", lds=0), I("s_memtime s[94:95]", "wait", lds=0), I("s_waitcnt lgkmcnt(0)", "wait", lds=0),
                            I("s_barrier", "bar"), I("s_memtime s[96:97]", "wait", lds=0), I("s_waitcnt lgkmcnt(0)", "wait", lds=0),
                            I("s_sub_u32 s92, s94, s92", "wait", lds=0), I("s_add_u32 s98, s98, s92", "wait", lds=0), I("s_max_u32 s100, s100, s92", "wait", lds=0),
                            I("s_sub_u32 s96, s96, s94", "wait", lds=0), I("s_add_u32 s99, s99, s96", "wait", lds=0)]
                    groups.append([None, seqx])
                else:
                    groups.append([None, [I(w, "wait", lds=0), I("s_barrier" if (bar and not opt["nobar"]) else "s_nop 0", "bar")]])
            if p == 39:
                groups.append([None, [I("WAITK", "wait", lds="K")]])
    seq = []
    for m, fl in groups:
        if m is not None: seq.append(m)
        if not (fl and fl[0].kind == "wait" and len(fl) > 2): fl = sorted(fl, key=lambda x: (2.5 if (x.kind == "dma" and opt["dlast"]) else 0) if x.kind in ("lds", "dma") else (1 if x.kind in ("salu",) else (3 if x.kind in ("wait", "bar") else 2)))
        seq += fl
    k = max(j for j, x in enumerate(seq) if x.text == "WAITK")
    n_after = 0
    for x in reversed(seq[:k]):
        if x.kind == "lds":
            if x.mem and x.mem[0] == "rV": n_after += 1
            else: break
        if x.kind == "wait": break
    seq[k] = I(f"s_waitcnt lgkmcnt({min(n_after, 15)})", "wait", lds=min(n_after, 15))
    if opt["nomfma"]: seq = [x for x in seq if x.kind != "mfma"]
    return seq
def dma_cur_flag(i, ph, dma):
    return dma[ph]
KORD = list(range(8)) + [16] + list(range(8, 12)) + [17] + list(range(12, 16))

def pad_fix(seq, prefix=()):
    fixed = list(prefix); npre = len(fixed)
    k = 0; seq = list(seq)
    while k < len(seq):
        it = seq[k]
        if it.kind in ("valu", "lds") and fixed and fixed[-1].kind == "trans" and set(fixed[-1].wr) & set(it.rd):
            fixed.append(I("s_nop 0", "salu"))
        if it.kind == "mfma":
            need = 0
            for d, x in enumerate(reversed(fixed[-2:])):
                if x.kind in ("valu", "trans") and set(x.wr) & set(it.rd): need = max(need, 2 - d)
            if need: fixed.append(I(f"s_nop {need-1}", "salu"))
        if it.kind == "dma" and fixed and fixed[-1].text.startswith("s_add_u32 m0"): fixed.append(I("s_nop 0", "salu"))
        if it.kind in ("valu", "trans", "lds"):
            need = 0
            for d, x in enumerate(reversed(fixed[-8:])):
                if x.kind == "mfma" and set(x.wr) & set(it.rd + it.wr): need = max(need, 8 - d)
            if need: fixed.append(I(f"s_nop {need-1}", "salu"))
        fixed.append(it); k += 1
    return fixed[npre:]

def check_waits(seq):
    pend = []; bad = 0
    for it in seq:
        if it.kind in ("mfma", "valu", "trans") or (it.kind == "lds" and it.lds == "w"):
            for wr in pend:
                if wr & set(it.rd):
                    sys.stderr.write(f"WAIT missing before [{it.text}]\n"); bad += 1
        if it.kind == "lds": pend.append(set(it.wr))
        if it.kind == "wait":
            n = it.lds
            pend = pend[len(pend) - n:] if n else []
    return bad

def check_hazards(seq, name):
    bad = 0
    for i, it in enumerate(seq):
        for d in range(1, 14):
            j = i - d
            if j < 0: break
            pr = seq[j]; between = d - 1
            W = set(pr.wr); msg = None
            if pr.kind == "mfma" and it.kind in ("valu", "trans", "lds") and (W & set(it.rd + it.wr)) and between < 8: msg = "mfma16->valu"
            if pr.kind in ("valu", "trans") and it.kind == "mfma" and (W & set(it.rd)) and between < 2: msg = "valu->mfma"
            if pr.kind == "trans" and it.kind in ("valu", "lds") and (W & set(it.rd)) and between < 1: msg = "trans->valu"
            if pr.kind == "mfma" and it.kind == "mfma" and (W & set(it.rd)) and set(pr.wr) != set(it.wr): msg = "mfma->mfma operand"
            if pr.kind == "salu" and pr.text.startswith("s_add_u32 m0") and it.kind == "dma" and between < 1: msg = "m0->dma"
            if msg and not EXPERIMENT:
                sys.stderr.write(f"HAZARD {name}: {msg}: [{pr.text}] -> [{it.text}] dist {between}\n"); bad += 1
    return bad

def symbolic_check(seqs, first):
    ver = {}; xi = first - 1; errs = 0
    if EXPERIMENT: return 0
    for i, seq in seqs:
        for it in seq:
            for r, e in it.exp.items():
                if r in ver and ver[r] != e:
                    sys.stderr.write(f"SYM it{i}: [{it.text}] {r} has {ver[r]} expected {e}\n"); errs += 1
                elif r not in ver and i > first + 1:
                    sys.stderr.write(f"SYM it{i}: [{it.text}] {r} never written, expected {e}\n"); errs += 1
            if it.prod is not None:
                for r in it.wr: ver[r] = it.prod
            if it.kind == "bar": xi = i
            if it.mem:
                k, n = it.mem
                ok = {"rK": n == xi + 2, "rV": n == xi + 1, "wK": n == xi + 5, "wV": n == xi + 4, "wP": n == xi + 2, "rP": n == xi + 1}[k]
                if not ok:
                    sys.stderr.write(f"SYM it{i}: [{it.text}] mem {it.mem} after X({xi})\n"); errs += 1
            if errs > 20: return errs
    return errs

hdr = [f"; @launch grid=(256,1,1) block=(256,1,1) lds={LDS_BYTES}",
       '.amdgcn_target "amdgcn-amd-amdhsa--gfx950"', ".text", f".globl {NAME}", ".p2align 8",
       f".type {NAME},@function", f"{NAME}:"]
E("s_cmp_ge_u32 s2, 256")
E("s_cbranch_scc1 L_done")
E("s_load_dwordx4 s[4:7], s[0:1], 0")
E("s_load_dwordx4 s[8:11], s[0:1], 16")
if opt["stamps"]:
    E(f"s_load_dwordx2 s[{S_WS}:{S_WS+1}], s[0:1], 40")
    E("s_memrealtime s[60:61]")
    E("s_memtime s[64:65]")
E("s_and_b32 s14, s2, 7")
E("s_lshr_b32 s15, s2, 4")
E("s_lshl_b32 s15, s15, 3")
E("s_add_u32 s14, s14, s15")
E("s_lshr_b32 s15, s2, 3")
E("s_and_b32 s15, s15, 1")
t0, t1, t2, t3, t4, t5, t6, t7 = [T + i for i in range(8)]
LANE, K32, HH, Q16, GG = T + 8, T + 9, T + 10, T + 11, T + 12
E(f"v_lshrrev_b32 {vr(t0)}, 6, v0")
E(f"v_and_b32 {vr(LANE)}, 63, v0")
E(f"v_readfirstlane_b32 s{S_W}, {vr(t0)}")
E(f"v_and_b32 {vr(K32)}, 31, {vr(LANE)}")
E(f"v_lshrrev_b32 {vr(HH)}, 5, {vr(LANE)}")
E(f"v_and_b32 {vr(Q16)}, 15, {vr(LANE)}")
E(f"v_lshrrev_b32 {vr(GG)}, 4, {vr(LANE)}")
E(f"s_lshl_b32 s{S_WB}, s{S_W}, 12")
E(f"s_lshl_b32 s{S_T+1}, s{S_W}, 3")
E(f"v_add_u32 {vr(t0)}, s{S_T+1}, {vr(HH)}")
E(f"v_lshlrev_b32 {vr(t1)}, 9, {vr(t0)}")
for i in range(4):
    E(f"v_add_u32 {vr(t2)}, {2*i}, {vr(t0)}")
    E(f"v_and_b32 {vr(t2)}, 15, {vr(t2)}")
    E(f"v_xor_b32 {vr(t2)}, {vr(t2)}, {vr(K32)}")
    E(f"v_lshl_add_u32 {vr(VOK+i)}, {vr(t2)}, 4, {vr(t1)}")
E("s_waitcnt lgkmcnt(0)")
E(f"s_lshl_b32 s{S_T}, s14, 19")
for srd, src in ((SRD_K, 6), (SRD_V, 8)):
    E(f"s_add_u32 s{srd}, s{src}, s{S_T}")
    E(f"s_addc_u32 s{srd+1}, s{src+1}, 0")
    if srd == SRD_V:
        E(f"s_sub_u32 s{srd}, s{srd}, 16384")
        E(f"s_subb_u32 s{srd+1}, s{srd+1}, 0")
    E(f"s_and_b32 s{srd+1}, s{srd+1}, 0xffff")
    E(f"s_mov_b32 s{srd+2}, {524288 + (16384 if srd == SRD_V else 0)}")
    E(f"s_mov_b32 s{srd+3}, 0x20000")
E(f"s_mul_i32 s{S_T}, s14, 155648")
E(f"s_mul_i32 s{S_T+1}, s15, {160*512}")
E(f"s_add_u32 s{S_T}, s{S_T}, s{S_T+1}")
E(f"s_mul_i32 s{S_T+1}, s15, {16*512}")
E(f"s_sub_u32 s{S_T+1}, {160*512}, s{S_T+1}")
for srd, src in ((SRD_Q, 4), (SRD_O, 10)):
    E(f"s_add_u32 s{srd}, s{src}, s{S_T}")
    E(f"s_addc_u32 s{srd+1}, s{src+1}, 0")
    E(f"s_and_b32 s{srd+1}, s{srd+1}, 0xffff")
    E(f"s_mov_b32 s{srd+2}, s{S_T+1}")
    E(f"s_mov_b32 s{srd+3}, 0x20000")

def dma_tile(ldsaddr, srd, soff, voff4):
    E(f"s_add_u32 m0, s{S_WB}, {ldsaddr}")
    E("s_nop 0")
    for i in range(4):
        pol = opt['qp'] if srd == SRD_Q else opt['kvp']
        E(f"buffer_load_dwordx4 {vr(voff4+i)}, s[{srd}:{srd+3}], {soff} offen offset:{i*1024} {pol} lds")
def dma_K(slot): dma_tile(KBASE + slot*16384, SRD_K, f"s{S_KOFF}", VOK)
def dma_V(slot): dma_tile(VBASE + slot*16384, SRD_V, f"s{S_VOFF}", VOV)
QSTAGE = [KBASE + 2*16384, KBASE + 3*16384, VBASE + 2*16384, VBASE + 3*16384, Q5BASE]

def vov_calc():
    for i in range(4):
        E(f"v_add_u32 {vr(t2)}, {2*i}, {vr(HH)}")
        E(f"v_lshlrev_b32 {vr(t2)}, 1, {vr(t2)}")
        E(f"v_xor_b32 {vr(t2)}, {vr(t2)}, {vr(K32)}")
        E(f"v_lshl_add_u32 {vr(VOV+i)}, {vr(t2)}, 4, {vr(t1)}")
def q_tiles():
    for t in range(5):
        E(f"s_mov_b32 s{S_T+2}, {t*16384}")
        dma_tile(QSTAGE[t], SRD_Q, f"s{S_T+2}", VOK)
        if opt["diag"] and t in (1, 4): DSTAMP()
def kv_first():
    E(f"s_mov_b32 s{S_KOFF}, 16384")
    dma_K(1)
    E(f"s_mov_b32 s{S_VOFF}, 16384")
    dma_V(0)
_dk = [0]
def DSTAMP():
    if opt["diag"]:
        out.append(f"  s_memtime s[{80+2*_dk[0]}:{81+2*_dk[0]}]"); _dk[0] += 1
DSTAMP()
E(f"s_mov_b32 s{S_KOFF}, 0")
dma_K(0)
DSTAMP()
q_tiles()
STAMP(0)
vov_calc()
kv_first()
E(f"s_mov_b32 s{S_MODE}, 0")
E(f"s_mov_b32 s{S_C}, {CSCALE:#x}")
E(f"s_mov_b32 s{S_THR}, {THR:#x}")
E(f"v_lshlrev_b32 {vr(t1)}, 9, {vr(Q16)}")
for j in range(4):
    E(f"v_add_u32 {vr(t2)}, {4*j}, {vr(GG)}")
    E(f"v_xor_b32 {vr(t2)}, {vr(t2)}, {vr(Q16)}")
    E(f"v_lshl_add_u32 {vr(VAK+j)}, {vr(t2)}, 4, {vr(t1)}")
E(f"v_lshrrev_b32 {vr(t0)}, 2, {vr(LANE)}")
E(f"v_lshlrev_b32 {vr(t1)}, 9, {vr(t0)}")
E(f"v_and_b32 {vr(t2)}, 3, {vr(LANE)}")
E(f"v_lshl_add_u32 {vr(t1)}, {vr(t2)}, 3, {vr(t1)}")
E(f"v_add_u32 {vr(t1)}, {VBASE}, {vr(t1)}")
E(f"v_and_b32 {vr(t0)}, 7, {vr(t0)}")
E(f"v_xor_b32 {vr(t0)}, s{S_W}, {vr(t0)}")
for j in range(8):
    E(f"v_xor_b32 {vr(t2)}, {j}, {vr(t0)}")
    E(f"v_lshl_add_u32 {vr(VAV+j)}, {vr(t2)}, 5, {vr(t1)}")
E(f"v_lshlrev_b32 {vr(t0)}, 4, {vr(LANE)}")
E(f"v_add_u32 {vr(P5R)}, {P5BASE}, {vr(t0)}")
E(f"s_lshr_b32 s{S_T+1}, s{S_W}, 1")
E(f"s_lshl_b32 s{S_T+1}, s{S_T+1}, 10")
E(f"s_and_b32 s{S_T+2}, s{S_W}, 1")
E(f"s_lshl_b32 s{S_T+2}, s{S_T+2}, 3")
E(f"s_add_u32 s{S_T+1}, s{S_T+1}, s{S_T+2}")
E(f"v_add_u32 {vr(P5W)}, s{S_T+1}, {vr(P5R)}")
for r in range(160): E(f"v_mov_b32 {vr(r)}, 0")
for r in (L0, L0 + 1, L5): E(f"v_mov_b32 {vr(r)}, 0")
STAMP(1)
E(f"s_lshl_b32 s{S_T+1}, s{S_W}, 14")
E(f"s_and_b32 s{S_T+2}, s{S_W}, 2")
E(f"s_lshl_b32 s{S_T+2}, s{S_T+2}, 14")
E(f"s_add_u32 s{S_T+1}, s{S_T+1}, s{S_T+2}")
E(f"s_add_u32 s{S_T+1}, s{S_T+1}, {2*16384}")
for j in range(4): E(f"v_add_u32 {vr(t0+j)}, s{S_T+1}, {vr(VAK+j)}")
E(f"s_lshr_b32 s{S_T+1}, s{S_W}, 1")
E(f"s_lshl_b32 s{S_T+1}, s{S_T+1}, 13")
E(f"s_add_u32 s{S_T+1}, s{S_T+1}, {Q5BASE}")
for j in range(4): E(f"v_add_u32 {vr(t4+j)}, s{S_T+1}, {vr(VAK+j)}")
S5B = PA
E("s_waitcnt vmcnt(8)")
STAMP(2)
E("s_barrier")
def rdK0(kb, s_): E(f"ds_read_b128 {ar(Kfrag(kb,s_),4)}, {vr(VAK+(s_&3))} offset:{kb*8192+(s_>>2)*256}")
def rdQ(s_):
    for qt in range(2): E(f"ds_read_b128 {ar(Qfrag(qt,s_),4)}, {vr(t0+(s_&3))} offset:{qt*8192+(s_>>2)*256}")
    E(f"ds_read_b128 {ar(A_Q5+4*s_,4)}, {vr(t4+(s_&3))} offset:{(s_>>2)*256}")
def mf0(kb, s_):
    for qt in range(2):
        S = Sblk(0, kb, qt); c = "0" if s_ == 0 else vr(S, 4)
        E(f"{MF} {vr(S,4)}, {ar(Kfrag(kb,s_),4)}, {ar(Qfrag(qt,s_),4)}, {c}")
    S = S5 if kb == 0 else S5B; c = "0" if s_ == 0 else vr(S, 4)
    E(f"{MF} {vr(S,4)}, {ar(Kfrag(kb,s_),4)}, {ar(A_Q5+4*s_,4)}, {c}")
for s_ in range(3):
    rdK0(0, s_); rdQ(s_)
for s_ in range(8):
    if s_ + 3 < 8:
        rdK0(0, s_ + 3); rdQ(s_ + 3); E("s_waitcnt lgkmcnt(12)")
    else:
        k = s_ + 3 - 8
        for kk in range(3 * k, min(3 * k + 3, 8)): rdK0(1, kk)
        n_after = 4 * (7 - s_) + min(3 * k + 3, 8)
        E(f"s_waitcnt lgkmcnt({min(n_after, 15)})")
    mf0(0, s_)
E("s_waitcnt lgkmcnt(0)")
E("s_barrier")
STAMP(3)
_d = []
def dma_list(ldsaddr, srd, soffval, sreg, voff4):
    L_ = [f"s_mov_b32 s{sreg}, {soffval}", f"s_add_u32 m0, s{S_WB}, {ldsaddr}", "s_nop 0"]
    for i in range(4):
        L_.append(f"buffer_load_dwordx4 {vr(voff4+i)}, s[{srd}:{srd+3}], s{sreg} offen offset:{i*1024} {opt['kvp']} lds")
    return L_
_d = dma_list(VBASE + 1*16384, SRD_V, 2*16384, S_T + 5, VOV) + dma_list(KBASE + 2*16384, SRD_K, 2*16384, S_KOFF, VOK)
for s_ in range(8):
    mf0(1, s_)
    for x in _d[s_*2:(s_+1)*2]: E(x)
assert len(_d) <= 16
E("s_nop 7")
E("s_branch L_qk0done")

LBL("L_restart")
E(f"s_mov_b32 s{S_KOFF}, 0")
dma_K(0)
E(f"s_mov_b32 s{S_KOFF}, 16384")
dma_K(1)
E(f"s_mov_b32 s{S_VOFF}, 16384")
dma_V(0)
E(f"s_mov_b32 s{S_VOFF}, {2*16384}")
dma_V(1)
E(f"s_mov_b32 s{S_KOFF}, {2*16384}")
dma_K(2)
for r in range(160): E(f"v_mov_b32 {vr(r)}, 0")
for r in (L0, L0 + 1, L5): E(f"v_mov_b32 {vr(r)}, 0")
E("s_waitcnt vmcnt(16)")
E("s_barrier")
V0 = Var(0, True, True)
def qk_both(slotoff):
    for kb in range(2):
        for s in range(8):
            E(f"ds_read_b128 {ar(Kfrag(kb,s),4)}, {vr(VAK+(s&3))} offset:{slotoff+kb*8192+(s>>2)*256}")
    E("s_waitcnt lgkmcnt(0)")
    for kb in range(2):
        for s in range(8):
            for qt in range(2):
                S = Sblk(0, kb, qt); c = "0" if s == 0 else vr(S, 4)
                E(f"{MF} {vr(S,4)}, {ar(Kfrag(kb,s),4)}, {ar(Qfrag(qt,s),4)}, {c}")
            S = S5 if kb == 0 else S5B; c = "0" if s == 0 else vr(S, 4)
            E(f"{MF} {vr(S,4)}, {ar(Kfrag(kb,s),4)}, {ar(A_Q5+4*s,4)}, {c}")
    E("s_nop 7")
    E("s_nop 1")
qk_both(0)
LBL("L_qk0done")
STAMP(4)
def cross3(regs, op):
    tmps = [t5, t6, t7]
    for sw in ("v_permlane32_swap_b32", "v_permlane16_swap_b32"):
        for r, t in zip(regs, tmps): E(f"v_mov_b32 {vr(t)}, {vr(r)}")
        for r, t in zip(regs, tmps): E(f"{sw} {vr(r)}, {vr(t)}")
        for r, t in zip(regs, tmps): E(f"{op} {vr(r)}, {vr(r)}, {vr(t)}")
def cross_op(dst, op, tmp):
    E(f"v_mov_b32 {vr(tmp)}, {vr(dst)}")
    E("s_nop 1")
    E(f"v_permlane32_swap_b32 {vr(dst)}, {vr(tmp)}")
    E("s_nop 1")
    E(f"{op} {vr(dst)}, {vr(dst)}, {vr(tmp)}")
    E(f"v_mov_b32 {vr(tmp)}, {vr(dst)}")
    E("s_nop 1")
    E(f"v_permlane16_swap_b32 {vr(dst)}, {vr(tmp)}")
    E("s_nop 1")
    E(f"{op} {vr(dst)}, {vr(dst)}, {vr(tmp)}")
def max8(dst, a, b, init):
    if init:
        E(f"v_max3_f32 {vr(dst)}, {vr(a)}, {vr(a+1)}, {vr(a+2)}")
        E(f"v_max3_f32 {vr(dst)}, {vr(dst)}, {vr(a+3)}, {vr(b)}")
        E(f"v_max3_f32 {vr(dst)}, {vr(dst)}, {vr(b+1)}, {vr(b+2)}")
        E(f"v_max_f32 {vr(dst)}, {vr(dst)}, {vr(b+3)}")
    else:
        for x in (a, a + 2, b, b + 2):
            E(f"v_max3_f32 {vr(dst)}, {vr(dst)}, {vr(x)}, {vr(x+1)}")
STAMP(5)
E("s_waitcnt vmcnt(8)")
STAMP(6)
E("s_barrier")
def first_max_and_s5(V):
    E(f"s_cmp_eq_u32 s{S_MODE}, 0")
    E(f"s_cbranch_scc0 L_have_max_{V.name}")
    for qt in range(2):
        max8(MC0 + qt, Sblk(0, 0, qt), Sblk(0, 1, qt), True)
    max8(MC5, S5, S5B, True)
    cross3((MC0, MC0 + 1, MC5), "v_max_f32")
    for r in (MC0, MC0 + 1, MC5):
        E(f"v_mul_f32 {vr(r)}, s{S_C}, {vr(r)}")
    LBL(f"L_have_max_{V.name}")
    if V.q5:
        if V.kh == 1:
            for r in range(4): E(f"v_mov_b32 {vr(S5+r)}, {vr(S5B+r)}")
        _s5 = softmax5_stream(0, V)
        for r in range(4): E(_s5["F"][r].text)
        for r in range(4): E(_s5["E"][r].text)
        E("s_nop 0")
        for r in range(4): E(_s5["A"][r].text)
        for r in (1, 3): E(_s5["C"][r].text)
        E(_s5["W"].text)

variants = [Var(0, True, True), Var(1, True, True)]
if opt["skip9"]:
    variants += [Var(0, True, False), Var(1, True, False), Var(0, False, False)]
E(f"s_and_b32 s{S_T}, s{S_W}, 1")
if opt["skip9"]:
    E(f"s_cmp_eq_u32 s15, 0")
    E("s_cbranch_scc1 L_disp_full")
    E(f"s_cmp_ge_u32 s{S_W}, 2")
    E(f"s_cbranch_scc1 L_var_{variants[4].name}")
    E(f"s_cmp_eq_u32 s{S_T}, 0")
    E(f"s_cbranch_scc1 L_var_{variants[2].name}")
    E(f"s_branch L_var_{variants[3].name}")
    LBL("L_disp_full")
E(f"s_cmp_eq_u32 s{S_T}, 1")
E(f"s_cbranch_scc1 L_var_{variants[1].name}")

t0, t1, t2, t3, t4, t5, t6, t7 = [T + i for i in range(8)]
EA = SA
SO = SB
R89 = PA + 4
def capture(fn):
    global out
    saved = out; out = []
    fn(); r = [x.strip() for x in out]; out = saved
    return r
def last_fillers():
    E(f"v_mbcnt_lo_u32_b32 {vr(LANE)}, -1, 0")
    E(f"v_mbcnt_hi_u32_b32 {vr(LANE)}, -1, {vr(LANE)}")
    cross3((L0, L0 + 1, L5), "v_add_f32")
    E(f"v_and_b32 {vr(Q16)}, 15, {vr(LANE)}")
    E(f"v_lshrrev_b32 {vr(GG)}, 4, {vr(LANE)}")
    E(f"s_lshr_b32 s{S_T}, s{S_W}, 1")
    E(f"s_lshl_b32 s{S_T}, s{S_T}, 7")
    E(f"s_and_b32 s{S_T+1}, s{S_W}, 1")
    E(f"s_lshl_b32 s{S_T+1}, s{S_T+1}, 6")
    E(f"s_add_u32 s{S_T}, s{S_T}, s{S_T+1}")
    E(f"s_add_u32 s{S_T}, s{S_T}, {XBASE}")
    E(f"v_lshlrev_b32 {vr(t0)}, 2, {vr(Q16)}")
    E(f"v_max3_f32 {vr(t2)}, {vr(L0)}, {vr(L0+1)}, {vr(L5)}")
    E(f"v_add_u32 {vr(t1)}, s{S_T}, {vr(t0)}")
    E(f"v_cmp_lt_f32 vcc, s{S_THR}, {vr(t2)}")
    E(f"ds_write_b32 {vr(t1)}, {vr(L5)}")
    E(f"v_rcp_f32 {vr(L0)}, {vr(L0)}")
    E(f"v_rcp_f32 {vr(L0+1)}, {vr(L0+1)}")
    E(f"s_lshl_b32 s{S_T+3}, s{S_W}, 2")
    E(f"s_add_u32 s{S_T+3}, s{S_T+3}, {XBASE+256}")
    E(f"v_mov_b32 {vr(t2)}, s{S_T+3}")
    E("s_cmp_lg_u64 vcc, 0")
    E(f"s_cselect_b32 s{S_T+2}, 1, 0")
    E(f"v_mov_b32 {vr(t1)}, s{S_T+2}")
    E(f"ds_write_b32 {vr(t2)}, {vr(t1)}")
    E(f"v_and_b32 {vr(t4)}, 1, {vr(GG)}")
    E(f"v_lshlrev_b32 {vr(t4)}, 1, {vr(t4)}")
    E(f"v_lshrrev_b32 {vr(t5)}, 1, {vr(GG)}")
    E(f"v_xor_b32 {vr(t6)}, {vr(t4)}, {vr(t5)}")
    E(f"s_lshl_b32 s{S_T}, s{S_W}, 1")
    E(f"v_xor_b32 {vr(t6)}, s{S_T}, {vr(t6)}")
    E(f"v_xor_b32 {vr(t6)}, {vr(t6)}, {vr(Q16)}")
    E(f"v_lshlrev_b32 {vr(t7)}, 9, {vr(Q16)}")
    E(f"s_lshl_b32 s{S_T+1}, s{S_W}, 14")
    E(f"v_add_u32 {vr(t3)}, s{S_T+1}, {vr(t7)}")
    E("s_waitcnt lgkmcnt(0)")
    E("s_barrier")
    E(f"v_add_u32 {vr(t0)}, {XBASE}, {vr(t0)}")
    E(f"ds_read_b32 {vr(MC0)}, {vr(t0)}")
    E(f"ds_read_b32 {vr(MC0+1)}, {vr(t0)} offset:64")
    E(f"ds_read_b32 {vr(MC5)}, {vr(t0)} offset:128")
    E(f"ds_read_b32 {vr(P5OUT)}, {vr(t0)} offset:192")
    E(f"v_mov_b32 {vr(t1)}, {XBASE+256}")
    E(f"ds_read_b128 {vr(PA,4)}, {vr(t1)}")
    for j in range(4):
        E(f"v_xor_b32 {vr(t2)}, {4*j}, {vr(t6)}")
        E(f"v_lshl_add_u32 {vr(EA+j)}, {vr(t2)}, 4, {vr(t3)}")
    E(f"v_lshlrev_b32 {vr(t4)}, 2, {vr(t4)}")
    E(f"v_add_u32 {vr(t4)}, {vr(t4)}, {vr(t5)}")
    E(f"v_add_u32 {vr(t4)}, s{S_T}, {vr(t4)}")
    E(f"v_xor_b32 {vr(t4)}, {vr(t4)}, {vr(Q16)}")
    E(f"v_lshl_add_u32 {vr(EA+4)}, {vr(t4)}, 4, {vr(t7)}")
    E(f"v_add_u32 {vr(EA+4)}, {VBASE}, {vr(EA+4)}")
    E(f"v_and_b32 {vr(K32)}, 31, {vr(LANE)}")
    E(f"v_lshrrev_b32 {vr(HH)}, 5, {vr(LANE)}")
    E(f"v_lshlrev_b32 {vr(t3)}, 9, {vr(HH)}")
    E(f"v_add_u32 {vr(t3)}, s{S_T+1}, {vr(t3)}")
    for j in range(8):
        E(f"v_add_u32 {vr(t2)}, {2*j}, {vr(HH)}")
        E(f"v_xor_b32 {vr(t2)}, {vr(t2)}, {vr(K32)}")
        E(f"v_lshl_add_u32 {vr(SO+j)}, {vr(t2)}, 4, {vr(t3)}")
    E(f"v_lshlrev_b32 {vr(t7)}, 4, {vr(LANE)}")
    E(f"v_add_u32 {vr(t6)}, s{S_T+1}, {vr(t7)}")
    E("s_waitcnt lgkmcnt(0)")
    E(f"v_or_b32 {vr(PA)}, {vr(PA)}, {vr(PA+1)}")
    E(f"v_add_f32 {vr(R89)}, {vr(MC0)}, {vr(MC0+1)}")
    E(f"v_or3_b32 {vr(PA)}, {vr(PA)}, {vr(PA+2)}, {vr(PA+3)}")
    E(f"v_add_f32 {vr(R89+1)}, {vr(MC5)}, {vr(P5OUT)}")
    E(f"v_readfirstlane_b32 s{S_T+6}, {vr(PA)}")
    E(f"v_rcp_f32 {vr(R89)}, {vr(R89)}")
    E(f"v_rcp_f32 {vr(R89+1)}, {vr(R89+1)}")
LASTF = capture(last_fillers)
def weave_last(seq):
    k0 = max(j for j, x in enumerate(seq) if x.kind == "bar") + 1
    head, tail = seq[:k0], [x for x in seq[k0:] if x.kind == "mfma"]
    n = len(tail); res = list(head); j = 0
    per = -(-len(LASTF) // n)
    for k, m in enumerate(tail):
        res.append(m)
        take = LASTF[j:j + per]; j += per
        res += [I(t, "raw") for t in take]
    res += [I(t, "raw") for t in LASTF[j:]]
    return res

totE = totH = totW = 0
for V in variants:
    def step_for(i):
        if i <= 27: return build_step(i, V, dma=(True, True))
        if i == 28: return build_step(i, V, dma=(True, False))
        if i == 29: return build_step(i, V, dma=(False, False), vm=8)
        if i == 30: return build_step(i, V, dma=(False, False), kr=False, vm=0)
        if i == 31: return build_step(i, V, qk=False, kr=False, dma=(False, False), sm_next=False, bar=False, p5r=False, vm=None, vr_next=False)
    allsteps = [step_for(i) for i in range(32)]
    pro = build_step(-1, V, dma=(True, True))
    xi = max(k for k, it in enumerate(pro) if it.kind == "bar")
    pro_tail = [it for it in pro[xi + 1:] if it.kind != "mfma"]
    if any(k in ("MK", "KO") and j == 1 for g in SCHEDS[V.par] for k, j in g):
        dg = dma_group(-1); pro_tail = [dg["KO"], dg["MK"]] + pro_tail
    totE += symbolic_check([(-1, [I("", "bar")] + pro_tail)] + [(i, s) for i, s in enumerate(allsteps)], -1)
    LBL(f"L_var_{V.name}")
    isP5 = lambda x: x.kind == "lds" and x.mem and x.mem[0] == "rP"
    mem1 = [x for x in pro_tail if x.kind == "lds" and not isP5(x)] + [x for x in pro_tail if x.kind in ("salu", "dma")]
    val1 = [x for x in pro_tail if x.kind in ("valu", "trans") and x.text.startswith("v_fma")] + [x for x in pro_tail if x.kind == "trans"] \
         + [x for x in pro_tail if x.kind == "valu" and not x.text.startswith("v_fma")]
    p5l = [x for x in pro_tail if isP5(x)]
    assert len(mem1) + len(val1) + len(p5l) + 1 == len(pro_tail)
    for it in [x for x in mem1 if x.kind == "lds"]: E(it.text)
    dl = dma_list(KBASE + 3*16384, SRD_K, 3*16384, S_KOFF, VOK) + dma_list(VBASE + 2*16384, SRD_V, 3*16384, S_VOFF, VOV)
    if opt["prodma"] == 0:
        for x in dl: E(x)
    first_max_and_s5(V)
    if opt["prodma"] == 0:
        for it in pad_fix([x for x in mem1 if x.kind != "lds"]): E(it.text)
    for it in pad_fix(val1): E(it.text)
    if opt["prodma"] == 1:
        for x in dl: E(x)
        for it in pad_fix([x for x in mem1 if x.kind != "lds"]): E(it.text)
    E("s_waitcnt lgkmcnt(0)")
    E("s_barrier")
    for it in p5l: E(it.text)
    E("s_waitcnt lgkmcnt(0)")
    E(f"s_mov_b32 s{S_IT}, 0")
    if opt["xdiag"]:
        for r in (98, 99, 100): E(f"s_mov_b32 s{r}, 0")
    if opt["stamps"]:
        E("s_memtime s[66:67]")
        E("s_memrealtime s[56:57]")
        E("s_waitcnt lgkmcnt(0)")
    out.append(".p2align 6")
    LBL(f"L_loop_{V.name}")
    for st in range(4):
        prev = pad_fix(build_step(st + 3, V, dma=(True, True))); seq = pad_fix(build_step(st + 4, V, dma=(True, True)), prev[-10:])
        totH += check_hazards(prev[-14:] + seq, f"{V.name}.step{st}")
        if not EXPERIMENT: totW += check_waits(prev + seq)
        for it in seq: E(it.text)
    E(f"s_add_u32 s{S_IT}, s{S_IT}, 1")
    E(f"s_cmp_lt_u32 s{S_IT}, 7")
    E(f"s_cbranch_scc1 L_loop_{V.name}")
    for i in range(28, 32):
        prev = allsteps[i - 1]; seq = allsteps[i]
        seq = pad_fix(seq, prev[-10:])
        if i == 31: seq = weave_last(seq)
        totH += check_hazards(prev[-14:] + seq, f"{V.name}.tail{i}")
        if not EXPERIMENT: totW += check_waits(prev + seq)
        for it in seq: E(it.text)
    if V is not variants[-1]: E("s_branch L_epi")
    if opt["verbose"]:
        if V is variants[0]:
            pat = PAT_B + PAT_A; over = 0
            for p in range(80):
                c = sum(2 if k in ("E", "E5") else 1 for k, _ in SCHED[p]); over += max(0, c - 2)
                sys.stderr.write(f"p {p:2d} {pat[p]} {c} {'OVER' if c > 2 else '    '} " + " ".join(f"{k}{j}" for k, j in SCHED[p]) + "\n")
            sys.stderr.write(f"overflow {over}\n")
        sys.stderr.write(f"variant {V.name}: instrs/step {len(build_step(4, V, dma=(True, True)))}\n")
assert EXPERIMENT or (totE == 0 and totH == 0 and totW == 0), (totE, totH, totW)

LBL("L_epi")
if opt["stamps"]:
    E("s_memtime s[68:69]")
    E("s_memrealtime s[58:59]")
    E("s_waitcnt lgkmcnt(0)")
E(f"s_cmp_lg_u32 s{S_MODE}, 0")
E("s_cbranch_scc1 L_final")
E(f"s_cmp_lg_u32 s{S_T+6}, 0")
E("s_cbranch_scc1 L_maxpass")
LBL("L_final")
def stage_pair(a, b, rpair, hi, addr, off):
    sel = "op_sel:[0,1] op_sel_hi:[1,1]" if hi else "op_sel_hi:[1,0]"
    for x in (a, a + 2, b, b + 2):
        E(f"v_pk_mul_f32 {vr(x,2)}, {vr(x,2)}, {vr(rpair,2)} {sel}")
    E(f"v_cvt_pk_bf16_f32 {vr(a)}, {vr(a)}, {vr(a+1)}")
    E(f"v_cvt_pk_bf16_f32 {vr(a+1)}, {vr(a+2)}, {vr(a+3)}")
    E(f"v_cvt_pk_bf16_f32 {vr(a+2)}, {vr(b)}, {vr(b+1)}")
    E(f"v_cvt_pk_bf16_f32 {vr(a+3)}, {vr(b+2)}, {vr(b+3)}")
    return [f"v_permlane16_swap_b32 {vr(a)}, {vr(a+2)}", f"v_permlane16_swap_b32 {vr(a+1)}, {vr(a+3)}", f"ds_write_b128 {vr(addr)}, {vr(a,4)} offset:{off}"]
E("s_nop 3")
pend = []
for i in (2, 6, 10, 14, 0, 4, 8, 12):
    for qt in range(2):
        nxt = stage_pair(O_OWN + 8*i + 4*qt, O_OWN + 8*(i+1) + 4*qt, L0, qt, EA + ((i >> 1) & 3), qt*8192 + (i >> 3)*256)
        for x in pend: E(x)
        pend = nxt
k5list = [(q5, k) for q5 in range(2) for k in (0, 2)]
for n_, (q5, k) in enumerate(k5list):
    nxt = stage_pair(O5 + 8*k + 4*q5, O5 + 8*(k+1) + 4*q5, R89, q5, EA + 4, q5*8192 + (k >> 1)*256)
    for x in pend: E(x)
    pend = nxt
    if n_ == 0:
        STAMP(7)
        E("s_waitcnt lgkmcnt(0)")
        for j in range(16):
            E(f"ds_read_b128 {vr(4*j,4)}, {vr(t6)} offset:{j*1024}")
E("s_nop 1")
for x in pend: E(x)
for j in range(16):
    if j % 4 == 0: E(f"s_mov_b32 s{S_T}, {(j>>2)*4096}")
    E(f"s_waitcnt lgkmcnt({min(15, 15-j+4)})")
    E(f"buffer_store_dwordx4 {vr(4*j,4)}, {vr(SO+(j&7))}, s[{SRD_O}:{SRD_O+3}], s{S_T} offen offset:{(j&3)*1024} {opt['op']}")
E(f"v_add_u32 {vr(t1)}, s{S_WB}, {vr(t7)}")
E(f"v_add_u32 {vr(t1)}, {VBASE}, {vr(t1)}")
E("s_waitcnt lgkmcnt(0)")
E("s_barrier")
STAMP(8)
for i in range(4):
    E(f"ds_read_b128 {vr(64+4*i,4)}, {vr(t1)} offset:{i*1024}")
E(f"s_mov_b32 s{S_T}, {4*16384}")
for i in range(4):
    E(f"s_waitcnt lgkmcnt({3-i})")
    E(f"buffer_store_dwordx4 {vr(64+4*i,4)}, {vr(VOK+i)}, s[{SRD_O}:{SRD_O+3}], s{S_T} offen offset:{i*1024} {opt['op']}")
if opt["stamps"]:
    E("s_waitcnt vmcnt(0)")
    E("s_memrealtime s[62:63]")
    E("s_memtime s[70:71]")
    E("s_waitcnt lgkmcnt(0)")
    E(f"s_mov_b32 s72, s{S_WS}")
    E(f"s_and_b32 s73, s{S_WS+1}, 0xffff")
    E("s_mov_b32 s74, 262144")
    E("s_mov_b32 s75, 0x20000")
    E("s_sub_u32 s66, s66, s64")
    E("s_sub_u32 s68, s68, s64")
    E("s_sub_u32 s70, s70, s64")
    for k, sreg in enumerate((60, 61, 62, 63)): E(f"v_mov_b32 v{k}, s{sreg}")
    E("v_mov_b32 v4, s66"); E("v_mov_b32 v5, s68"); E("v_mov_b32 v6, s70"); E("s_sub_u32 s58, s58, s56"); E("v_mov_b32 v7, s58")
    E("s_lshl_b32 s76, s2, 6")
    E(f"s_lshl_b32 s77, s{S_W}, 4")
    E("s_add_u32 s76, s76, s77")
    E("v_mov_b32 v8, s76")
    E(f"v_cmp_eq_u32 vcc, 0, {vr(LANE)}")
    E("s_and_saveexec_b64 s[78:79], vcc")
    E("buffer_store_dwordx4 v[0:3], v8, s[72:75], 0 offen")
    E("v_add_u32 v8, 0x8000, v8")
    E("buffer_store_dwordx4 v[4:7], v8, s[72:75], 0 offen")
    if opt["xdiag"]:
        for k, r in enumerate((98, 99, 100)): E(f"s_add_u32 s{80+2*k}, s{r}, s64")
    for q in range(3):
        for k in range(4):
            kk = q*4+k
            if kk < 9:
                E(f"s_sub_u32 s{80+2*kk}, s{80+2*kk}, s64")
                E(f"v_mov_b32 v{12+k}, s{80+2*kk}")
        E(f"v_add_u32 v8, 0x4000, v8")
        E("s_nop 1")
        E("buffer_store_dwordx4 v[12:15], v8, s[72:75], 0 offen")
E("s_endpgm")

LBL("L_maxpass")
E(f"s_mov_b32 s{S_MODE}, 1")
for r in (MC0, MC0 + 1, MC5): E(f"v_mov_b32 {vr(r)}, 0xff800000")
E(f"s_mov_b32 s{S_KOFF}, 0")
LBL("L_maxloop")
E("s_barrier")
dma_K(0)
E("s_waitcnt vmcnt(0)")
E("s_barrier")
qk_both(0)
for qt in range(2): max8(MC0 + qt, Sblk(0, 0, qt), Sblk(0, 1, qt), False)
max8(MC5, S5, S5B, False)
E(f"s_add_u32 s{S_KOFF}, s{S_KOFF}, 16384")
E(f"s_cmp_lt_u32 s{S_KOFF}, 524288")
E("s_cbranch_scc1 L_maxloop")
for r in (MC0, MC0 + 1, MC5):
    cross_op(r, "v_max_f32", t7)
    E(f"v_mul_f32 {vr(r)}, s{S_C}, {vr(r)}")
E("s_barrier")
E("s_branch L_restart")
LBL("L_done")
E("s_endpgm")

tail = ['.section .rodata,"a"', ".p2align 6", f".amdhsa_kernel {NAME}",
        "  .amdhsa_next_free_vgpr 512", "  .amdhsa_next_free_sgpr 102", "  .amdhsa_accum_offset 256",
        "  .amdhsa_group_segment_fixed_size 0", "  .amdhsa_kernarg_size 48", "  .amdhsa_user_sgpr_count 2",
        "  .amdhsa_user_sgpr_kernarg_segment_ptr 1", "  .amdhsa_system_sgpr_workgroup_id_x 1", ".end_amdhsa_kernel"]
print("\n".join(hdr + out + tail))
```
